```python
import torch

def _softmax(x, axis=-1):
    return torch.softmax(x, dim=axis)
def _gelu(x):
    return torch.nn.functional.gelu(x, approximate="tanh")
def _silu(x):
    return torch.nn.functional.silu(x)
def _sigmoid(x):
    return torch.sigmoid(x)
def _layernorm(x, axis=-1, eps=1e-5):
    m = x.mean(dim=axis, keepdim=True)
    v = x.var(dim=axis, keepdim=True, unbiased=False)
    return (x - m) / torch.sqrt(v + eps)
def _scatter_add(tgt, idx, src, axis=0):
    return tgt.clone().index_add_(axis, idx, src)
def _segment_sum(src, seg, n):
    out = torch.zeros((n,) + src.shape[1:], dtype=src.dtype)
    return out.index_add_(0, seg, src)
def _pad(x, pw):
    flat = tuple(v for pair in reversed(pw) for v in pair)
    return torch.nn.functional.pad(x, flat)

kernel_name = 'recurrent_scan__linear_kernel_hedgehog__geglu_ffn__prompt'

def setup_inputs():

    _w = (lambda a: (lambda t: t.to(torch.bfloat16) if t.is_floating_point() else t)(torch.as_tensor(a)))
    def _A_setup():
        B, S, D, H = 1, 2048, 512, 32
        Dh = D // H
        return {
            "x": _w((lambda *s: torch.randn(*s, dtype=torch.bfloat16) * 0.05)(B, S, D)),
            "wqkv": _w((lambda *s: torch.randn(*s, dtype=torch.bfloat16) * 0.2)(D, 3 * D)),
            "w_phi": _w((lambda *s: torch.randn(*s, dtype=torch.bfloat16) * 0.2)(H, Dh, Dh) * (Dh ** -0.5)),
            "wo": _w((lambda *s: torch.randn(*s, dtype=torch.bfloat16) * 0.05)(D, D)),
        }
    _A_in = _A_setup()

    def _B_setup():
        B, S, D, F = 1, 2048, 512, 1376
        return {
            "x": _w((lambda *s: torch.randn(*s, dtype=torch.bfloat16) * 0.05)(B, S, D)),
            "w_gate": _w((lambda *s: torch.randn(*s, dtype=torch.bfloat16) * 0.05)(D, F)),
            "w_up": _w((lambda *s: torch.randn(*s, dtype=torch.bfloat16) * 0.05)(D, F)),
            "w_down": _w((lambda *s: torch.randn(*s, dtype=torch.bfloat16) * 0.05)(F, D)),
        }
    _B_in = _B_setup()

    return {
        "A_x": _A_in["x"],
        "A_wqkv": _A_in["wqkv"],
        "A_w_phi": _A_in["w_phi"],
        "A_wo": _A_in["wo"],
        "B_x": _B_in["x"],
        "B_w_gate": _B_in["w_gate"],
        "B_w_up": _B_in["w_up"],
        "B_w_down": _B_in["w_down"],
    }

def reference(A_x, A_wqkv, A_w_phi, A_wo, B_x, B_w_gate, B_w_up, B_w_down):
    def _A_ref(x, wqkv, w_phi, wo):
        B, S, D = x.shape
        H = 32; Dh = D // H
        qkv = (lambda x, *d: x.permute(*d))((x @ wqkv).reshape(B, S, 3, H, Dh), 2, 0, 3, 1, 4)
        q, k, v = qkv[0], qkv[1], qkv[2]
        pq = torch.einsum("bhsd,hdf->bhsf", q, w_phi)
        pk = torch.einsum("bhsd,hdf->bhsf", k, w_phi)
        phi_q = torch.concatenate([_softmax(pq, axis=-1), _softmax(-pq, axis=-1)], axis=-1)
        phi_k = torch.concatenate([_softmax(pk, axis=-1), _softmax(-pk, axis=-1)], axis=-1)
        kv = torch.einsum("bhsf,bhsd->bhfd", phi_k, v)
        z  = torch.einsum("bhsf->bhf", phi_k)
        num = torch.einsum("bhqf,bhfd->bhqd", phi_q, kv)
        den = torch.einsum("bhqf,bhf->bhq", phi_q, z)[..., None] + 1e-6
        o = num / den
        return (lambda x, *d: x.permute(*d))(o, 0, 2, 1, 3).reshape(B, S, D) @ wo

    def _B_ref(x, w_gate, w_up, w_down):
        return (_gelu(x @ w_gate) * (x @ w_up)) @ w_down

    x = A_x
    xn = _layernorm(x, axis=-1)
    s = _A_ref(xn, A_wqkv, A_w_phi, A_wo)
    g = _silu(_B_ref(xn, B_w_gate, B_w_up, B_w_down))
    return x + s * g
```

```python
class Asm:
    def __init__(self):
        self.lines = []
        self._uid = 0
        self.vm = []
    def __call__(self, s):
        for ln in s.strip("\n").split("\n"):
            self.lines.append("  " + ln.strip() if not ln.strip().endswith(":") else ln.strip())
    def label(self, name):
        self.lines.append(name + ":")
    def uid(self, base="L"):
        self._uid += 1
        return f"{base}_{self._uid}"
    def comment(self, s):
        self.lines.append("  ; " + s)
    def text(self):
        return "\n".join(self.lines) + "\n"
    def vm_reset(self, tags=None):
        self.vm = list(tags or [])
    def vm_issue(self, tag, n=1):
        self.vm += [tag] * n
    def vm_wait_count(self, tags):
        if isinstance(tags, str): tags = [tags]
        last = -1
        for i, t in enumerate(self.vm):
            if t in tags: last = i
        return len(self.vm) - 1 - last if last >= 0 else None
    def wait_vm(self, tags, extra=""):
        n = self.vm_wait_count(tags)
        if n is None: return
        n = min(n, 63)
        self(f"s_waitcnt vmcnt({n}){extra}")

def vr(base, n):
    return f"v[{base}:{base+n-1}]" if n > 1 else f"v{base}"
def sr(base, n):
    return f"s[{base}:{base+n-1}]" if n > 1 else f"s{base}"

KD = """
.p2align 6
.amdhsa_kernel {name}
  .amdhsa_next_free_vgpr {vgpr}
  .amdhsa_next_free_sgpr 102
  .amdhsa_accum_offset {acc}
  .amdhsa_group_segment_fixed_size 0
  .amdhsa_kernarg_size 88
  .amdhsa_user_sgpr_count 2
  .amdhsa_user_sgpr_kernarg_segment_ptr 1
  .amdhsa_system_sgpr_workgroup_id_x 1
.end_amdhsa_kernel
"""
def kernel_header(name):
    return f""".globl {name}
.p2align 8
.type {name},@function
{name}:
"""
```

```python
from asmlib import *
import struct

def f2u(x): return struct.unpack("<I", struct.pack("<f", x))[0]
def flit(x): return "0x%08x" % f2u(x)

H_OFF, O_OFF, PHIQ_OFF, KVP_OFF = 0x0, 0x800000, 0xC00000, 0x1400000
BUF0, BUF1, MISC = 0, 65536, 131072
CSP_OFF = MISC; CSF_OFF = MISC + 5120; ST_OFF = MISC + 6144; RQ_OFF = MISC + 7168; VIMG_OFF = MISC + 8192; PHI_OFF = MISC + 16384
LOG2E = 1.4426950408889634
C0 = -2.0 * 0.7978845608028654 * LOG2E
C1 = C0 * 0.044715

S_W, S_TG, S_HB, S_M, S_C = 3, 4, 5, 6, 7
S_RET = 30
SRD_X, SRD_WQ, SRD_WG, SRD_WU, SRD_WS, SRD_PHI = 32, 36, 40, 44, 48, 52
S_T0, S_T1, S_T2, S_T3 = 56, 57, 58, 59
S_TB = 60
S_XB = 65
S_W1K = 66
S_HST = 67
S_U0, S_U1 = 68, 69
S_EXA, S_EXB, S_EXC = 70, 72, 74
S_TB32 = 76
V_LANE = 1
V_X0, V_X1, V_WQ, V_WF = 2, 3, 4, 5
V_XA = 6
V_WA0 = 10
V_WA1 = 14
V_NMEAN, V_RSTD, V_IRSTD = 18, 19, 20
V_CSRD, V_CSADD, V_L16 = 21, 22, 23
V_SEL = 24
V_CSD = 28
V_ST = 32
V_T = 36
V_E = 48
V_F = 80
V_ACC2 = 96
V_ACC1 = 112
V_X = 128
V_A0 = 6
V_A1 = 32
V_CSCUR = 2
V_C1 = 3
V_CLOG = 0
V_ONES = 47
V_KA1, V_KONE, V_K2, V_K3 = 28, 29, 30, 31

def slot_reads(a, i, wa_base, F):
    off = (i >> 2) * 8192
    a(f"ds_read_b64_tr_b16 {vr(F,2)}, v{wa_base + (i & 3)} offset:{off}")
    a(f"ds_read_b64_tr_b16 {vr(F+2,2)}, v{wa_base + (i & 3)} offset:{off+512}")

def mfma32(a, acc, A, B, first):
    c = "0" if first else vr(acc, 16)
    a(f"v_mfma_f32_32x32x16_bf16 {vr(acc,16)}, {vr(A,4)}, {vr(B,4)}, {c}")

def colsum_mfma(a, F, first):
    c = "0" if first else vr(V_CSD, 4)
    a(f"v_mfma_f32_16x16x32_bf16 {vr(V_CSD,4)}, {vr(F,4)}, {vr(V_SEL,4)}, {c}")

def gen_mblock(a, name, acc, wa_base, swapped):
    a.label(name + "_pre")
    for i in range(3): slot_reads(a, i, wa_base, V_F + 4 * (i % 4))
    a(f"s_setpc_b64 {sr(S_RET,2)}")
    for half in range(2):
        a.label(name + ("_a" if half == 0 else "_b"))
        for i in range(16 * half, 16 * half + 16):
            if i + 3 < 32:
                slot_reads(a, i + 3, wa_base, V_F + 4 * ((i + 3) % 4))
                a("s_waitcnt lgkmcnt(6)")
            else:
                a(f"s_waitcnt lgkmcnt({2 * (31 - i)})")
            F = V_F + 4 * (i % 4)
            X = V_X + 4 * i
            if swapped: mfma32(a, acc, X, F, i == 0)
            else: mfma32(a, acc, F, X, i == 0)
            if i % 4 == 0: colsum_mfma(a, F, i == 0)
        if half == 1:
            a("s_nop 7")
            a(f"v_add_u32 v{V_T}, s{S_T0}, v{V_CSADD}")
            a(f"s_mov_b64 exec, {sr(S_EXC,2)}")
            for r in range(4):
                a(f"ds_write_b32 v{V_T}, v{V_CSD + r} offset:{16*r}")
            a("s_mov_b64 exec, -1")
        a(f"s_setpc_b64 {sr(S_RET,2)}")

def gen_EG(a):
    for part in range(2):
        a.label("EG_a" if part == 0 else "EG_b")
        gs = (0, 1) if part == 0 else (2, 3)
        for g in gs:
            a(f"ds_read_b128 {vr(V_F + 4 * (g & 1), 4)}, v{V_CSRD} offset:{32 * g}")
        for gi, g in enumerate(gs):
            a(f"s_waitcnt lgkmcnt({1 - gi})")
            cs = V_F + 4 * (g & 1)
            T = [V_T + k for k in range(12)]
            idx = [4 * g + r for r in range(4)]
            gg = [T[0], T[1], T[2], T[3]]; tt = [T[4], T[5], T[6], T[7]]; ee = [T[8], T[9], T[10], T[11]]
            for r in range(4): a(f"v_fma_f32 v{gg[r]}, v{cs + r}, v{V_NMEAN}, v{V_ACC1 + idx[r]}")
            for r in range(4): a(f"v_mul_f32 v{gg[r]}, v{gg[r]}, v{V_RSTD}")
            for r in range(4): a(f"v_mul_f32 v{tt[r]}, v{gg[r]}, v{gg[r]}")
            for r in range(4): a(f"v_fmaak_f32 v{tt[r]}, v{tt[r]}, v{V_C1}, {flit(C0)}")
            for r in range(4): a(f"v_mul_f32 v{tt[r]}, v{tt[r]}, v{gg[r]}")
            for r in range(4): a(f"v_exp_f32 v{ee[r]}, v{tt[r]}")
            for r in range(4): a(f"v_fma_f32 v{ee[r]}, v{ee[r]}, v{V_IRSTD}, v{V_IRSTD}")
            for r in range(4): a(f"v_rcp_f32 v{ee[r]}, v{ee[r]}")
            for r in range(4): a(f"v_mul_f32 v{V_E + idx[r]}, v{gg[r]}, v{ee[r]}")
        a(f"s_setpc_b64 {sr(S_RET,2)}")

def gen_EU(a):
    a.label("EU")
    for g in range(4):
        a(f"ds_read_b128 {vr(V_F + 4 * g, 4)}, v{V_CSRD} offset:{32 * g}")
    for g in range(4):
        a(f"s_waitcnt lgkmcnt({3 - g})")
        cs = V_F + 4 * g
        for r in range(4): a(f"v_fma_f32 v{V_T + r}, v{cs + r}, v{V_NMEAN}, v{V_ACC2 + 4 * g + r}")
        for r in range(4): a(f"v_mul_f32 v{V_T + r}, v{V_T + r}, v{V_E + 4 * g + r}")
        a(f"v_cvt_pk_bf16_f32 v{V_T + 4 + 2 * g}, v{V_T}, v{V_T + 1}")
        a(f"v_cvt_pk_bf16_f32 v{V_T + 5 + 2 * g}, v{V_T + 2}, v{V_T + 3}")
        if g == 1: a(f"buffer_store_dwordx4 {vr(V_T + 4, 4)}, v{V_L16}, {sr(SRD_WS,4)}, s{S_T1} offen")
        if g == 3: a(f"buffer_store_dwordx4 {vr(V_T + 8, 4)}, v{V_L16}, {sr(SRD_WS,4)}, s{S_T1} offen offset:1024")
    a(f"s_setpc_b64 {sr(S_RET,2)}")

def gen_SM(a):
    a.label("SM1a")
    for g in range(4):
        a(f"ds_read_b128 {vr(V_F + 4 * g, 4)}, v{V_CSRD} offset:{32 * g}")
    for g in range(4):
        a(f"s_waitcnt lgkmcnt({3 - g})")
        for r in range(4):
            a(f"v_fma_f32 v{V_ACC1 + 4 * g + r}, v{V_F + 4 * g + r}, v{V_NMEAN}, v{V_ACC1 + 4 * g + r}")
    P = V_T
    for q in range(8):
        a(f"v_cvt_pk_bf16_f32 v{P + q}, v{V_ACC1 + 2 * q}, v{V_ACC1 + 2 * q + 1}")
    a("s_nop 1")
    a(f"v_mfma_f32_32x32x16_bf16 {vr(V_ACC1,16)}, {vr(V_A0,4)}, {vr(P,4)}, 0")
    a(f"v_mfma_f32_32x32x16_bf16 {vr(V_ACC1,16)}, {vr(V_A1,4)}, {vr(P+4,4)}, {vr(V_ACC1,16)}")
    a("s_nop 7"); a("s_nop 7")
    p = lambda i: V_ACC1 + i
    mx, mn = V_T + 8, V_T + 9
    a(f"v_max3_f32 v{mx}, v{p(0)}, v{p(1)}, v{p(2)}")
    a(f"v_min3_f32 v{mn}, v{p(0)}, v{p(1)}, v{p(2)}")
    for i in range(3, 15, 2):
        a(f"v_max3_f32 v{mx}, v{mx}, v{p(i)}, v{p(i+1)}")
        a(f"v_min3_f32 v{mn}, v{mn}, v{p(i)}, v{p(i+1)}")
    a(f"v_max_f32 v{mx}, v{mx}, v{p(15)}")
    a(f"v_min_f32 v{mn}, v{mn}, v{p(15)}")
    a(f"v_mul_f32 v{mx}, v{mx}, v{V_CLOG}")
    a(f"v_mul_f32 v{mn}, v{mn}, v{V_CLOG}")
    for i in range(16):
        a(f"v_fma_f32 v{V_E + i}, v{p(i)}, v{V_CLOG}, -v{mx}")
        a(f"v_fma_f32 v{V_E + 16 + i}, -v{p(i)}, v{V_CLOG}, v{mn}")
    a(f"s_setpc_b64 {sr(S_RET,2)}")
    a.label("SM1b")
    for i in range(32):
        a(f"v_exp_f32 v{V_E + i}, v{V_E + i}")
    a(f"s_setpc_b64 {sr(S_RET,2)}")
    a.label("SM2")
    s0, s1, s2, s3 = V_T, V_T + 1, V_T + 2, V_T + 3
    a(f"v_add_f32 v{s0}, v{V_E}, v{V_E + 1}")
    a(f"v_add_f32 v{s1}, v{V_E + 2}, v{V_E + 3}")
    a(f"v_add_f32 v{s2}, v{V_E + 16}, v{V_E + 17}")
    a(f"v_add_f32 v{s3}, v{V_E + 18}, v{V_E + 19}")
    for i in range(4, 16, 2):
        a(f"v_add_f32 v{s0}, v{s0}, v{V_E + i}")
        a(f"v_add_f32 v{s1}, v{s1}, v{V_E + i + 1}")
        a(f"v_add_f32 v{s2}, v{s2}, v{V_E + 16 + i}")
        a(f"v_add_f32 v{s3}, v{s3}, v{V_E + 16 + i + 1}")
    a(f"v_add_f32 v{s0}, v{s0}, v{s1}")
    a(f"v_add_f32 v{s2}, v{s2}, v{s3}")
    a(f"v_rcp_f32 v{s0}, v{s0}")
    a(f"v_rcp_f32 v{s2}, v{s2}")
    a("s_nop 0")
    for i in range(16): a(f"v_mul_f32 v{V_E + i}, v{V_E + i}, v{s0}")
    for i in range(16, 32): a(f"v_mul_f32 v{V_E + i}, v{V_E + i}, v{s2}")
    for q in range(16):
        a(f"v_cvt_pk_bf16_f32 v{V_E + q}, v{V_E + 2 * q}, v{V_E + 2 * q + 1}")
    a(f"s_setpc_b64 {sr(S_RET,2)}")

def gen_EV_KV(a):
    a.label("EV")
    vp = V_T
    for g in range(4):
        R = V_F + 8 * (g & 1); Q = R + 4
        a(f"ds_read_b128 {vr(R,4)}, v{V_T + 10} offset:{32 * g}")
        a(f"ds_read_b128 {vr(Q,4)}, v{V_T + 10} offset:{512 + 32 * g}")
        a("s_waitcnt lgkmcnt(0)")
        for r in range(4): a(f"v_mul_f32 v{Q + r}, v{Q + r}, v{V_T + 8}")
        for r in range(4): a(f"v_fma_f32 v{Q + r}, v{V_ACC2 + 4 * g + r}, v{R + r}, v{Q + r}")
        a(f"v_cvt_pk_bf16_f32 v{vp + 2 * g}, v{Q}, v{Q + 1}")
        a(f"v_cvt_pk_bf16_f32 v{vp + 2 * g + 1}, v{Q + 2}, v{Q + 3}")
    a(f"s_setpc_b64 {sr(S_RET,2)}")
    a.label("KVW")
    for q in range(4):
        a(f"ds_write_b128 v{V_T + 8}, {vr(V_E + 4 * q, 4)} offset:{16 * q}")
    a(f"ds_write_b128 v{V_T + 9}, {vr(vp, 4)}")
    a(f"ds_write_b128 v{V_T + 9}, {vr(vp + 4, 4)} offset:1024")
    a(f"s_setpc_b64 {sr(S_RET,2)}")
    a.label("KVX")
    D = V_F
    for tgp in range(4):
        for ks in range(2):
            PF = V_T; Bp = V_CSD
            a(f"ds_read_b64_tr_b16 {vr(PF, 2)}, v{V_T + 8} offset:{tgp * 4096 + 1024 * ks}")
            a(f"ds_read_b64_tr_b16 {vr(PF + 2, 2)}, v{V_T + 8} offset:{tgp * 4096 + 1024 * ks + 512}")
            a(f"ds_read_b128 {vr(Bp, 4)}, v{V_T + 9} offset:{tgp * 2048 + 1024 * ks}")
            a("s_waitcnt lgkmcnt(0)")
            for q in range(4):
                a(f"v_bfi_b32 v{Bp + q}, v{V_T + 10}, v{Bp + q}, v{V_T + 11}")
            a("s_nop 1")
            first = (tgp == 0 and ks == 0)
            a(f"v_mfma_f32_32x32x16_bf16 {vr(D,16)}, {vr(PF,4)}, {vr(Bp,4)}, {'0' if first else vr(D,16)}")
    a("s_nop 7"); a("s_nop 7")
    a(f"s_mov_b64 exec, {sr(82,2)}")
    for g in range(4):
        a(f"buffer_store_dwordx4 {vr(D + 4 * g, 4)}, v{V_T + 7}, {sr(SRD_WS,4)}, s{S_T1} offen offset:{544 * g}")
    a("s_mov_b64 exec, -1")
    a(f"s_setpc_b64 {sr(S_RET,2)}")

STAMP = {"on": False, "n": 0}
def stamp(a):
    if not STAMP["on"]: return
    k = STAMP["n"]; STAMP["n"] += 1
    assert k < 16
    a("s_memtime s[84:85]")
    a("s_waitcnt lgkmcnt(0)")
    a(f"s_mov_b32 s{86 + k}, s84")
def stamp_reset(k): STAMP["n"] = k
def stamp_dump(a):
    if not STAMP["on"]: return
    a(f"s_lshl_b32 s84, s2, 3")
    a(f"s_add_u32 s84, s84, s{S_W}")
    a(f"s_lshl_b32 s84, s84, 6")
    a(f"s_add_u32 s84, s84, 0x2000000")
    a(f"v_mov_b32 v{V_T+1}, 0")
    for k in range(16):
        a(f"v_mov_b32 v{V_T}, s{86 + k}")
        a(f"buffer_store_dword v{V_T}, v{V_T+1}, {sr(SRD_WS,4)}, s84 offen offset:{4 * k}")

def call(a, label):
    a(f"s_call_b64 {sr(S_RET,2)}, {label}")

def dma_w_units(a, T, tile, units):
    srd, voff, stride = tile
    buf = BUF0 if T % 2 == 0 else BUF1
    for q in units:
        a(f"s_add_u32 m0, s{S_W1K}, {buf + q * 8192}")
        a(f"s_add_u32 s{S_T2}, s{S_TB + T}, {q * 64 * stride}")
        a(f"buffer_load_dwordx4 v{voff}, {sr(srd,4)}, s{S_T2} offen lds")
        a.vm_issue(f"T{T}u{q}")

def dma_x(a, s):
    base = [65536, 81920, 98304, 114688, 131072, 147456, 0, 16384][s]
    for e in range(2):
        a(f"s_lshl_b32 s{S_T3}, s{S_W1K}, 1")
        a(f"s_add_u32 m0, s{S_T3}, {base + e * 1024}")
        a(f"s_add_u32 s{S_T2}, s{S_XB}, {e * 8192 + s * 128}")
        a(f"buffer_load_dwordx4 v{V_X0 if e == 0 else V_X1}, {sr(SRD_X,4)}, s{S_T2} offen lds")
        a.vm_issue(f"x{s}")

def gen_k1(a, name="k1_kernel"):
    TQ = (SRD_WQ, V_WQ, 3072); TG = (SRD_WG, V_WF, 2752); TU = (SRD_WU, V_WF, 2752)
    a.lines.append(kernel_header(name))
    a(f"""
s_cmp_ge_u32 s2, 256
s_cbranch_scc1 k1_exit
s_load_dwordx16 s[8:23], s[0:1], 0
s_load_dwordx4 s[24:27], s[0:1], 64
s_load_dwordx2 s[28:29], s[0:1], 80
v_and_b32 v{V_LANE}, 63, v0
v_lshrrev_b32 v{V_T}, 6, v0
s_and_b32 s{S_T0}, s2, 7            ; xcd
s_lshr_b32 s{S_T1}, s2, 3           ; j
v_readfirstlane_b32 s{S_W}, v{V_T}
s_lshr_b32 s{S_T2}, s{S_T0}, 2      ; mh
s_and_b32 s{S_T3}, s{S_T0}, 3       ; cq
s_and_b32 s{S_M}, s{S_T1}, 7
s_lshl_b32 s{S_T2}, s{S_T2}, 3
s_add_u32 s{S_M}, s{S_M}, s{S_T2}   ; m
s_lshr_b32 s{S_T1}, s{S_T1}, 3
s_lshl_b32 s{S_T3}, s{S_T3}, 2
s_add_u32 s{S_C}, s{S_T1}, s{S_T3}  ; c 0..15
s_cmp_eq_u32 s{S_C}, 15
s_cbranch_scc1 k1_exit
s_and_b32 s{S_TG}, s{S_W}, 3
s_lshr_b32 s{S_HB}, s{S_W}, 2
s_lshl_b32 s{S_W1K}, s{S_W}, 10
""")
    l = V_LANE
    T = V_T
    a(f"""
v_lshrrev_b32 v{T}, 3, v{l}            ; row = i>>3
v_and_b32 v{T+1}, 7, v{l}              ; j
v_lshrrev_b32 v{T+2}, 4, v{l}          ; i>>4
v_xor_b32 v{T+3}, v{T+1}, v{T+2}       ; j ^ (i>>4)
v_lshlrev_b32 v{T+3}, 4, v{T+3}
v_lshl_add_u32 v{V_X0}, v{T}, 10, v{T+3}
v_xor_b32 v{V_X1}, 64, v{V_X0}
v_and_b32 v{T+2}, 1, v{T+2}            ; (i>>4)&1
v_lshlrev_b32 v{T+2}, 2, v{T+2}
v_xor_b32 v{T+3}, v{T+1}, v{T+2}       ; j ^ 4*((row>>1)&1)
v_lshlrev_b32 v{T+3}, 4, v{T+3}
v_mul_u32_u24 v{T+4}, 3072, v{T}
v_add_u32 v{V_WQ}, v{T+4}, v{T+3}
v_mul_u32_u24 v{T+4}, 2752, v{T}
v_add_u32 v{V_WF}, v{T+4}, v{T+3}
v_lshlrev_b32 v{V_L16}, 4, v{l}
""")
    a(f"""
v_and_b32 v{T}, 31, v{l}               ; t'
v_lshrrev_b32 v{T+1}, 5, v{l}          ; hf
v_bfe_u32 v{T+2}, v{l}, 1, 3           ; f
v_xor_b32 v{T+2}, v{T+2}, v{T+1}       ; u
s_lshl_b32 s{S_T0}, s{S_TG}, 12        ; 32*tg*128
s_add_u32 s{S_T0}, s{S_T0}, 65536
v_lshlrev_b32 v{T+3}, 7, v{T}
v_add_u32 v{T+3}, s{S_T0}, v{T+3}
""")
    for i in range(4):
        a(f"""
s_add_u32 s{S_T1}, s{S_TG}, {i}
s_and_b32 s{S_T1}, s{S_T1}, 3
s_lshl_b32 s{S_T1}, s{S_T1}, 1
v_xor_b32 v{T+4}, s{S_T1}, v{T+2}
v_lshl_add_u32 v{V_XA+i}, v{T+4}, 4, v{T+3}
""")
    a(f"""
v_bfe_u32 v{T+4}, v{l}, 2, 2           ; r
v_lshl_add_u32 v{T+5}, v{T+1}, 3, v{T+4}   ; 8kh + r
v_lshlrev_b32 v{T+5}, 7, v{T+5}        ; *128
v_bfe_u32 v{T+6}, v{l}, 4, 1           ; n16
v_lshlrev_b32 v{T+6}, 1, v{T+6}
v_bfe_u32 v{T+7}, v{l}, 1, 1           ; c>>1
v_add_u32 v{T+6}, v{T+6}, v{T+7}
s_lshl_b32 s{S_T0}, s{S_HB}, 2
v_add_u32 v{T+6}, s{S_T0}, v{T+6}      ; 4hb + 2n16 + (c>>1)
v_lshrrev_b32 v{T+7}, 1, v{T+4}        ; r>>1
v_lshlrev_b32 v{T+7}, 2, v{T+7}
v_xor_b32 v{T+6}, v{T+6}, v{T+7}
v_lshl_add_u32 v{T+5}, v{T+6}, 4, v{T+5}
v_and_b32 v{T+7}, 1, v{l}
v_lshl_add_u32 v{T+5}, v{T+7}, 3, v{T+5}   ; wa
""")
    for i in range(4):
        a(f"""
s_add_u32 s{S_T1}, s{S_TG}, {i}
s_and_b32 s{S_T1}, s{S_T1}, 3
s_lshl_b32 s{S_T1}, s{S_T1}, 11
v_add_u32 v{V_WA0+i}, s{S_T1}, v{T+5}
v_add_u32 v{V_WA1+i}, 0x10000, v{V_WA0+i}
""")
    a(f"""
v_and_b32 v{T+4}, 15, v{l}             ; c
v_bfe_u32 v{T+6}, v{l}, 4, 1           ; g&1
v_cmp_eq_u32 vcc, v{T+4}, v{T+6}
v_mov_b32 v{T+7}, 0x3f803f80
s_nop 1
v_cndmask_b32 v{V_SEL}, 0, v{T+7}, vcc
v_mov_b32 v{V_SEL+1}, v{V_SEL}
v_mov_b32 v{V_SEL+2}, v{V_SEL}
v_mov_b32 v{V_SEL+3}, v{V_SEL}
v_mov_b32 v{V_ONES}, 0x3f803f80
v_lshrrev_b32 v{T+6}, 4, v{l}
v_lshlrev_b32 v{T+6}, 6, v{T+6}
v_lshl_add_u32 v{T+6}, v{T+4}, 8, v{T+6}
s_lshl_b32 s{S_T0}, s{S_HB}, 9
s_lshl_b32 s{S_T1}, s{S_TG}, 2
s_add_u32 s{S_T0}, s{S_T0}, s{S_T1}
s_add_u32 s{S_T0}, s{S_T0}, {CSP_OFF}
v_add_u32 v{V_CSADD}, s{S_T0}, v{T+6}
v_lshlrev_b32 v{T+6}, 4, v{T+1}
s_lshl_b32 s{S_T0}, s{S_W}, 7
s_add_u32 s{S_T0}, s{S_T0}, {CSF_OFF}
v_add_u32 v{V_CSRD}, s{S_T0}, v{T+6}
s_mov_b32 s{S_EXC}, 0x00030003
s_mov_b32 s{S_EXC+1}, 0x00030003
s_mov_b32 s{S_EXA}, -1
s_mov_b32 s{S_EXA+1}, 0
s_mov_b32 s{S_EXB}, 0
s_mov_b32 s{S_EXB+1}, -1
s_mov_b32 s78, 0x0001ffff
s_mov_b32 s79, 0x0001ffff
s_mov_b32 s80, 0xffff0001
s_mov_b32 s81, 0xffff0001
v_mov_b32 v{V_ST}, 0
v_mov_b32 v{V_ST+1}, 0
v_mov_b32 v{V_ST+2}, 0
v_mov_b32 v{V_ST+3}, 0
s_waitcnt lgkmcnt(0)
""")
    def srd(base, p, size):
        a(f"s_mov_b32 s{base}, s{p}\ns_mov_b32 s{base+1}, s{p+1}\ns_mov_b32 s{base+2}, {size}\ns_mov_b32 s{base+3}, 0x00020000")
    srd(SRD_X, 8, 2048 * 1024); srd(SRD_WQ, 10, 512 * 3072); srd(SRD_PHI, 12, 32 * 512)
    srd(SRD_WG, 18, 512 * 2752); srd(SRD_WU, 20, 512 * 2752); srd(SRD_WS, 28, 0x10000000)
    a(f"""
s_lshl_b32 s{S_XB}, s{S_M}, 17
s_lshl_b32 s{S_T0}, s{S_W}, 14
s_add_u32 s{S_XB}, s{S_XB}, s{S_T0}
s_lshl_b32 s{S_TB32}, s{S_M}, 2
s_add_u32 s{S_TB32}, s{S_TB32}, s{S_TG}      ; tb
s_mul_i32 s{S_HST}, s{S_TB32}, {86*1024}
s_lshr_b32 s{S_T1}, s{S_C}, 1
s_mul_i32 s{S_T2}, s{S_W}, {8*3072}          ; 8w*3072
s_mul_i32 s{S_T3}, s{S_W}, {8*2752}
s_bitcmp1_b32 s{S_C}, 0
s_cbranch_scc1 k1_ffn_setup
s_lshl_b32 s{S_T0}, s{S_T1}, 7               ; 128*hq
s_add_u32 s{S_TB+4}, s{S_T2}, s{S_T0}        ; Q
s_add_u32 s{S_TB+0}, s{S_TB+4}, 1024         ; K
s_add_u32 s{S_TB+1}, s{S_TB+4}, 2048         ; V
s_add_u32 s{S_TB+2}, s{S_T3}, s{S_T0}
s_mov_b32 s{S_TB+3}, s{S_TB+2}
s_mov_b32 s{S_U0}, s{S_T1}
s_branch k1_att
k1_ffn_setup:
s_lshl_b32 s{S_U0}, s{S_T1}, 1
s_add_u32 s{S_U0}, s{S_U0}, 8
s_add_u32 s{S_U1}, s{S_U0}, 1
s_lshl_b32 s{S_T0}, s{S_U0}, 7
s_add_u32 s{S_TB+0}, s{S_T3}, s{S_T0}
s_mov_b32 s{S_TB+1}, s{S_TB+0}
s_add_u32 s{S_TB+2}, s{S_TB+0}, 128
s_mov_b32 s{S_TB+3}, s{S_TB+2}
s_branch k1_ffn
""")
    def startup(tiles, att):
        a.vm_reset()
        stamp_reset(0); stamp(a)
        if att:
            a(f"""
v_bfe_u32 v{T}, v{l}, 2, 1              ; hrho
v_bfe_u32 v{T+1}, v{l}, 3, 2            ; rho>>3
v_and_b32 v{T+2}, 3, v{l}
v_lshl_add_u32 v{T+1}, v{T+1}, 2, v{T+2}   ; f
v_lshrrev_b32 v{T+2}, 5, v{l}           ; hfA
v_lshlrev_b32 v{T+2}, 2, v{T+2}         ; 4hfA
v_lshl_add_u32 v{T+2}, v{T}, 4, v{T+2}
v_lshl_add_u32 v{T+1}, v{T+2}, 4, v{T+1}   ; *16 + f
v_lshlrev_b32 v{T+1}, 1, v{T+1}
s_lshl_b32 s{S_T0}, s{S_U0}, 1
s_add_u32 s{S_T0}, s{S_T0}, s{S_HB}     ; hp
s_lshl_b32 s{S_T0}, s{S_T0}, 10         ; *2 heads*512B
""")
            for j in range(8):
                d = j if j < 4 else 8 + j - 4
                a(f"buffer_load_ushort v{V_E + 4 + j}, v{T+1}, {sr(SRD_PHI,4)}, s{S_T0} offen offset:{d * 32}")
                a.vm_issue("phi")
        for s in range(6):
            dma_x(a, s)
            dma_w_units(a, 0, tiles[0], [s])
        dma_w_units(a, 0, tiles[0], [6, 7])
        for s in range(8):
            tags = [f"x{s}", f"T0u{s}"]
            if s == 7: tags += [f"T1u{q}" for q in range(4)]
            a.wait_vm([f"x{s}", f"T0u{s}"])
            a("s_barrier")
            if s in (0, 1, 4, 7): stamp(a)
            if s == 1: dma_w_units(a, 1, tiles[1], [0, 1])
            if s == 2: dma_x(a, 6); dma_w_units(a, 1, tiles[1], [2, 3])
            if s == 3: dma_w_units(a, 1, tiles[1], [4, 5])
            if s == 4: dma_x(a, 7); dma_w_units(a, 1, tiles[1], [6, 7])
            if s == 4:
                for i in range(4): a(f"v_add_u32 v{V_XA+i}, 0x10000, v{V_XA+i}")
            if s == 6:
                for i in range(4): a(f"v_add_u32 v{V_XA+i}, 0xfffe0000, v{V_XA+i}")
            xoff = {0: 0, 1: 16384, 2: 32768, 3: 49152, 4: 0, 5: 16384, 6: 0, 7: 16384}[s]
            for ii in range(4):
                i = 4 * s + ii
                a(f"ds_read_b128 {vr(V_X + 4 * i, 4)}, v{V_XA + ii} offset:{xoff}")
                slot_reads(a, i, V_WA0, V_F + 4 * ii)
            for ii in range(4):
                i = 4 * s + ii
                a(f"s_waitcnt lgkmcnt({9 - 3 * ii})")
                mfma32(a, V_ACC1, V_F + 4 * ii, V_X + 4 * i, i == 0)
                if ii == 0: colsum_mfma(a, V_F, i == 0)
                lab = a.uid("st")
                a(f"s_cmp_eq_u32 s{S_HB}, 0")
                a(f"s_cbranch_scc1 {lab}_a")
                for q in range(4): a(f"v_dot2c_f32_bf16 v{V_ST + q}, v{V_X + 4 * i + q}, v{V_X + 4 * i + q}")
                a(f"s_branch {lab}_b")
                a.label(lab + "_a")
                for q in range(4): a(f"v_dot2c_f32_bf16 v{V_ST + q}, v{V_X + 4 * i + q}, v{V_ONES}")
                a.label(lab + "_b")
        a("s_nop 7")
        a(f"s_mov_b64 exec, {sr(S_EXC,2)}")
        for r in range(4): a(f"ds_write_b32 v{V_CSADD}, v{V_CSD + r} offset:{16*r}")
        a("s_mov_b64 exec, -1")
        a(f"""
v_add_f32 v{V_ST}, v{V_ST}, v{V_ST+1}
v_add_f32 v{V_ST+2}, v{V_ST+2}, v{V_ST+3}
v_add_f32 v{V_ST}, v{V_ST}, v{V_ST+2}
v_mov_b32 v{V_ST+1}, v{V_ST}
s_nop 1
v_permlane32_swap_b32 v{V_ST}, v{V_ST+1}
v_add_f32 v{V_ST}, v{V_ST}, v{V_ST+1}
v_and_b32 v{T}, 31, v{l}
s_lshl_b32 s{S_T0}, s{S_TG}, 5
v_add_u32 v{T}, s{S_T0}, v{T}
v_lshlrev_b32 v{T}, 2, v{T}
v_add_u32 v{T}, {ST_OFF}, v{T}
s_lshl_b32 s{S_T0}, s{S_HB}, 9
v_add_u32 v{T+1}, s{S_T0}, v{T}
ds_write_b32 v{T+1}, v{V_ST}
""")
        a.wait_vm([f"T1u{q}" for q in range(5)], " lgkmcnt(0)")
        a("s_barrier")
        stamp(a)
        dma_w_units(a, 2, tiles[2], list(range(8)))
        a(f"""
ds_read_b32 v{T+2}, v{T}
ds_read_b32 v{T+3}, v{T} offset:512
s_waitcnt lgkmcnt(0)
v_mul_f32 v{T+2}, {flit(1/512)}, v{T+2}          ; mean
v_mul_f32 v{T+3}, {flit(1/512)}, v{T+3}          ; E[x^2]
v_fma_f32 v{T+3}, -v{T+2}, v{T+2}, v{T+3}        ; var
v_max_f32 v{T+3}, 0, v{T+3}
v_add_f32 v{T+3}, {flit(1e-5)}, v{T+3}
v_sub_f32 v{V_NMEAN}, 0, v{T+2}
v_rsq_f32 v{V_RSTD}, v{T+3}
v_sqrt_f32 v{V_IRSTD}, v{T+3}
v_mov_b32 v{V_C1}, {flit(C1)}
""")
        if att:
            a(f"""
v_mul_f32 v{V_CLOG}, {flit(LOG2E)}, v{V_RSTD}
v_mul_f32 v{T+4}, v{V_NMEAN}, v{V_RSTD}
ds_write_b32 v{T}, v{V_RSTD} offset:{RQ_OFF - ST_OFF}
ds_write_b32 v{T}, v{T+4} offset:{RQ_OFF - ST_OFF + 512}
v_bfe_u32 v{T+5}, v{l}, 2, 1
v_cmp_eq_u32 vcc, 0, v{T+5}
""")
            a.wait_vm("phi")
            for q in range(4):
                a(f"v_lshl_or_b32 v{V_E+q}, v{V_E+5+2*q}, 16, v{V_E+4+2*q}")
            for q in range(4):
                a(f"v_cndmask_b32 v{V_A0+q}, 0, v{V_E+q}, vcc")
            for q in range(4):
                a(f"v_cndmask_b32 v{V_A1+q}, v{V_E+q}, 0, vcc")
            a("s_waitcnt lgkmcnt(0)")

    def setcs(tile):
        a(f"""
v_and_b32 v{T+9}, 31, v{l}
s_lshl_b32 s{S_T0}, s{S_HB}, 9
s_add_u32 s{S_T0}, s{S_T0}, {CSP_OFF + tile * 1024}
v_lshlrev_b32 v{T+10}, 4, v{T+9}
v_add_u32 v{T+10}, s{S_T0}, v{T+10}
ds_read_b128 {vr(T+4,4)}, v{T+10}
s_lshl_b32 s{S_T0}, s{S_W}, 7
s_add_u32 s{S_T0}, s{S_T0}, {CSF_OFF}
v_lshlrev_b32 v{T+9}, 2, v{T+9}
v_add_u32 v{T+9}, s{S_T0}, v{T+9}
s_waitcnt lgkmcnt(0)
v_add_f32 v{T+4}, v{T+4}, v{T+5}
v_add_f32 v{T+6}, v{T+6}, v{T+7}
v_add_f32 v{T+8}, v{T+4}, v{T+6}
ds_write_b32 v{T+9}, v{T+8}
""")
    def mtile(T_):
        a(f"s_mov_b32 s{S_T0}, {T_ * 1024}")
    def bar(wait_tags=None, lg=True):
        n = a.vm_wait_count(wait_tags) if wait_tags else None
        s = ""
        if n is not None: s += f" vmcnt({min(n,63)})"
        if lg: s += " lgkmcnt(0)"
        if s: a("s_waitcnt" + s)
        a("s_barrier")
    def U(T_, qs): return [f"T{T_}u{q}" for q in qs]
    def hstore_soff(unit_sgpr):
        a(f"s_lshl_b32 s{S_T1}, s{unit_sgpr}, 12")
        a(f"s_lshl_b32 s{S_T2}, s{S_HB}, 11")
        a(f"s_add_u32 s{S_T1}, s{S_T1}, s{S_T2}")
        a(f"s_add_u32 s{S_T1}, s{S_T1}, s{S_HST}")

    def phase_tail_dma(p, half, tiles, NT):
        if p % 2 == 1:
            T_ = (p - 1) // 2 + 2
            if T_ < NT and T_ >= 3:
                dma_w_units(a, T_, tiles[T_], range(0, 4) if half == 0 else range(4, 8))
    def need_tags(p, half, NT):
        h = 2 * p + half + 1
        tags = []
        for hh, first_only in ((h, False), (h + 1, True)):
            T_, rem = divmod(hh, 4)
            if T_ < NT and rem in (0, 1):
                qs = range(0, 4) if rem == 0 else range(4, 8)
                tags += U(T_, list(qs)[:1] if first_only else qs)
        return tags

    def run_phase(p, tiles, NT, mlabel, Tm, parts, pre_next=None):
        for half in range(2):
            if mlabel:
                if half == 1: mtile(Tm)
                call(a, mlabel + ("_a" if half == 0 else "_b"))
            else:
                parts[half]()
                if half == 1 and pre_next: call(a, pre_next + "_pre")
            tags = need_tags(p, half, NT)
            n = a.vm_wait_count(tags) if tags else None
            w = f" vmcnt({min(n,63)})" if n is not None else ""
            if mlabel:
                if half == 1: w += " lgkmcnt(0)"
            elif half == 1 and pre_next: w += " lgkmcnt(6)"
            else: w += " lgkmcnt(0)"
            if w: a("s_waitcnt" + w)
            a("s_barrier")
            if half == 1: stamp(a)
            phase_tail_dma(p, half, tiles, NT)

    def e_G(part, tile):
        def f():
            if part == 0: setcs(tile)
            call(a, "EG_a" if part == 0 else "EG_b")
        return f
    def e_U(tile, unit):
        def f():
            setcs(tile); hstore_soff(unit)
            call(a, "EU"); a.vm_issue("hst", 2)
        return f
    def e_U_guard(tile, unit):
        def f():
            lab = a.uid("sk")
            a(f"s_lshl_b32 s{S_T1}, s{unit}, 1\ns_add_u32 s{S_T1}, s{S_T1}, s{S_HB}\ns_cmp_ge_u32 s{S_T1}, 43\ns_cbranch_scc1 {lab}")
            e_U(tile, unit)()
            a.label(lab)
        return f
    def seq(*fs):
        def f():
            for x in fs: x()
        return f
    nop = lambda: None
    def e_SM1a(tile):
        def f(): setcs(tile); call(a, "SM1a")
        return f
    e_SM1b = lambda: call(a, "SM1b")
    e_SM2 = lambda: call(a, "SM2")
    def e_V():
        setcs(1)
        a(f"""
v_lshrrev_b32 v{T+9}, 5, v{l}
v_lshlrev_b32 v{T+9}, 4, v{T+9}
s_lshl_b32 s{S_T0}, s{S_TG}, 7
s_add_u32 s{S_T0}, s{S_T0}, {RQ_OFF}
v_add_u32 v{T+10}, s{S_T0}, v{T+9}
""")
        call(a, "EV")
    def e_KVW():
        a(f"""
v_and_b32 v{T+9}, 31, v{l}              ; t
v_lshlrev_b32 v{T+8}, 6, v{T+9}
v_lshrrev_b32 v{T+9}, 5, v{l}
v_lshl_add_u32 v{T+8}, v{T+9}, 11, v{T+8}
s_lshl_b32 s{S_T0}, s{S_TG}, 12
s_add_u32 s{S_T0}, s{S_T0}, {PHI_OFF}
v_add_u32 v{T+8}, s{S_T0}, v{T+8}
s_lshl_b32 s{S_T0}, s{S_TG}, 11
s_add_u32 s{S_T0}, s{S_T0}, {VIMG_OFF}
v_add_u32 v{T+9}, s{S_T0}, v{V_L16}
""")
        call(a, "KVW")
    def e_KVX():
        lab = a.uid("kvx")
        a(f"""
s_cmp_ge_u32 s{S_TG}, 2
s_cbranch_scc1 {lab}
v_lshrrev_b32 v{T+9}, 5, v{l}
v_bfe_u32 v{T+10}, v{l}, 2, 2           ; r
v_lshl_add_u32 v{T+10}, v{T+9}, 2, v{T+10}   ; 4kh + r
v_lshlrev_b32 v{T+10}, 6, v{T+10}
v_bfe_u32 v{T+11}, v{l}, 4, 1           ; n16
v_lshl_add_u32 v{T+10}, v{T+11}, 5, v{T+10}
v_and_b32 v{T+8}, 3, v{l}
v_lshl_add_u32 v{T+10}, v{T+8}, 3, v{T+10}
s_lshl_b32 s{S_T0}, s{S_TG}, 11
s_add_u32 s{S_T0}, s{S_T0}, {PHI_OFF}
v_add_u32 v{T+8}, s{S_T0}, v{T+10}
v_cmp_eq_u32 vcc, s{S_TG}, v{T+11}
v_and_b32 v{T+6}, 15, v{l}              ; d = n&15
v_mul_u32_u24 v{T+9}, 17, v{T+9}        ; hf*17
s_nop 0
v_cndmask_b32 v{T+10}, 0, -1, vcc
v_cndmask_b32 v{T+6}, 16, v{T+6}, vcc
v_add_u32 v{T+7}, v{T+9}, v{T+6}
v_lshlrev_b32 v{T+7}, 4, v{T+7}
v_add_u32 v{T+9}, {VIMG_OFF}, v{V_L16}
v_mov_b32 v{T+11}, 0x3f803f80
s_cmp_eq_u32 s{S_TG}, 0
s_cselect_b32 s82, s78, s80
s_mov_b32 s83, s82
s_lshl_b32 s{S_T1}, s{S_M}, 5
s_lshl_b32 s{S_T2}, s{S_U0}, 2
s_add_u32 s{S_T1}, s{S_T1}, s{S_T2}
s_add_u32 s{S_T1}, s{S_T1}, s{S_TG}
s_xor_b32 s{S_T2}, s{S_HB}, 1
s_lshl_b32 s{S_T2}, s{S_T2}, 1
s_add_u32 s{S_T1}, s{S_T1}, s{S_T2}
s_mul_i32 s{S_T1}, s{S_T1}, 2176
s_add_u32 s{S_T1}, s{S_T1}, {KVP_OFF}
""")
        call(a, "KVX")
        a.label(lab)
    def e_Qstore():
        a(f"""
s_lshl_b32 s{S_T1}, s{S_TB32}, 4
s_lshl_b32 s{S_T2}, s{S_U0}, 1
s_add_u32 s{S_T1}, s{S_T1}, s{S_T2}
s_add_u32 s{S_T1}, s{S_T1}, s{S_HB}
s_lshl_b32 s{S_T1}, s{S_T1}, 12
s_add_u32 s{S_T1}, s{S_T1}, {PHIQ_OFF}
""")
        for q in range(4):
            a(f"buffer_store_dwordx4 {vr(V_E + 4 * q, 4)}, v{V_L16}, {sr(SRD_WS,4)}, s{S_T1} offen offset:{1024 * q}")
        a.vm_issue("qst", 4)

    M1, M2, M2S = "MB1", "MB2", "MB2S"
    a.label("k1_att")
    tiles = [TQ, TQ, TG, TU, TQ]; NT = 5
    startup(tiles, True)
    vm_after = list(a.vm)
    a(f"s_cmp_eq_u32 s{S_HB}, 0")
    a("s_cbranch_scc1 k1_att_A")
    run_phase(2, tiles, NT, None, None, [e_SM1a(0), e_SM1b], pre_next=M2S)
    run_phase(3, tiles, NT, M2S, 1, None)
    run_phase(4, tiles, NT, None, None, [seq(e_SM2, e_V), e_KVW], pre_next=M1)
    run_phase(5, tiles, NT, M1, 2, None)
    run_phase(6, tiles, NT, None, None, [seq(e_KVX, e_G(0, 2)), e_G(1, 2)], pre_next=M2)
    run_phase(7, tiles, NT, M2, 3, None)
    run_phase(8, tiles, NT, None, None, [e_U(3, S_U0), nop], pre_next=M1)
    run_phase(9, tiles, NT, M1, 4, None)
    e_SM1a(4)(); e_SM1b(); e_SM2(); e_Qstore()
    stamp(a); stamp_dump(a)
    a("s_endpgm")
    a.label("k1_att_A")
    a.vm_reset(vm_after); stamp_reset(6)
    call(a, M2S + "_pre")
    run_phase(2, tiles, NT, M2S, 1, None)
    run_phase(3, tiles, NT, None, None, [e_SM1a(0), e_SM1b], pre_next=M1)
    run_phase(4, tiles, NT, M1, 2, None)
    run_phase(5, tiles, NT, None, None, [seq(e_KVX, e_SM2, e_V), e_KVW], pre_next=M2)
    run_phase(6, tiles, NT, M2, 3, None)
    run_phase(7, tiles, NT, None, None, [e_G(0, 2), seq(e_G(1, 2), e_U(3, S_U0))], pre_next=M1)
    run_phase(8, tiles, NT, M1, 4, None)
    run_phase(9, tiles, NT, None, None, [seq(e_SM1a(4), e_SM1b), seq(e_SM2, e_Qstore)])
    stamp(a); stamp_dump(a)
    a("s_endpgm")
    a.label("k1_ffn")
    tiles = [TG, TU, TG, TU]; NT = 4
    startup(tiles, False)
    vm_after = list(a.vm)
    a(f"s_cmp_eq_u32 s{S_HB}, 0")
    a("s_cbranch_scc1 k1_ffn_A")
    run_phase(2, tiles, NT, None, None, [e_G(0, 0), e_G(1, 0)], pre_next=M2)
    run_phase(3, tiles, NT, M2, 1, None)
    run_phase(4, tiles, NT, None, None, [e_U(1, S_U0), nop], pre_next=M1)
    run_phase(5, tiles, NT, M1, 2, None)
    run_phase(6, tiles, NT, None, None, [e_G(0, 2), e_G(1, 2)], pre_next=M2)
    run_phase(7, tiles, NT, M2, 3, None)
    e_U_guard(3, S_U1)()
    stamp(a); stamp_dump(a)
    a("s_endpgm")
    a.label("k1_ffn_A")
    a.vm_reset(vm_after); stamp_reset(6)
    call(a, M2 + "_pre")
    run_phase(2, tiles, NT, M2, 1, None)
    run_phase(3, tiles, NT, None, None, [e_G(0, 0), seq(e_G(1, 0), e_U(1, S_U0))], pre_next=M1)
    run_phase(4, tiles, NT, M1, 2, None)
    run_phase(5, tiles, NT, None, None, [e_G(0, 2), e_G(1, 2)], pre_next=M2)
    run_phase(6, tiles, NT, M2, 3, None)
    run_phase(7, tiles, NT, None, None, [e_U(3, S_U1), nop])
    stamp(a); stamp_dump(a)
    a("s_endpgm")
    a.label("k1_exit")
    a("s_endpgm")
    gen_mblock(a, M1, V_ACC1, V_WA0, False)
    gen_mblock(a, M2, V_ACC2, V_WA1, False)
    gen_mblock(a, M2S, V_ACC2, V_WA1, True)
    gen_EG(a); gen_EU(a); gen_SM(a); gen_EV_KV(a)
```

```python
from asmlib import *
from p1 import H_OFF, O_OFF, PHIQ_OFF, KVP_OFF, flit

def gen_k2(a, name="k2_kernel"):
    a.lines.append(kernel_header(name))
    SRD = 32
    a(f"""
s_cmp_ge_u32 s2, 256
s_cbranch_scc1 k2_exit
s_load_dwordx2 s[28:29], s[0:1], 80
v_and_b32 v1, 63, v0
v_lshrrev_b32 v2, 6, v0
s_lshr_b32 s6, s2, 4              ; m
s_and_b32 s7, s2, 15              ; hp
v_readfirstlane_b32 s3, v2        ; w
v_min_u32 v3, 33, v1
v_lshlrev_b32 v3, 4, v3
v_lshlrev_b32 v4, 4, v1           ; lane*16
s_waitcnt lgkmcnt(0)
s_mov_b32 s{SRD}, s28
s_mov_b32 s{SRD+1}, s29
s_mov_b32 s{SRD+2}, 0x10000000
s_mov_b32 s{SRD+3}, 0x00020000
s_lshl_b32 s10, s6, 2
s_add_u32 s10, s10, s3            ; tb
s_lshl_b32 s11, s10, 4
s_add_u32 s11, s11, s7
s_lshl_b32 s11, s11, 12
s_add_u32 s11, s11, {PHIQ_OFF}
""")
    for q in range(4):
        a(f"buffer_load_dwordx4 {vr(100 + 4 * q, 4)}, v4, {sr(SRD,4)}, s11 offen offset:{1024 * q}")
    a(f"""
s_lshl_b32 s12, s7, 3
s_lshl_b32 s13, s3, 1
s_add_u32 s12, s12, s13
s_mul_i32 s12, s12, 544
s_add_u32 s12, s12, {KVP_OFF}
""")
    for p in range(2):
        for mm in range(16):
            a(f"s_add_u32 s14, s12, {mm * 69632 + p * 544}")
            a(f"buffer_load_dwordx4 {vr(8 + 4 * mm, 4)}, v3, {sr(SRD,4)}, s14 offen")
        for mm in range(1, 16):
            a(f"s_waitcnt vmcnt({15 - mm})")
            for r in range(4):
                a(f"v_add_f32 v{8 + r}, v{8 + r}, v{8 + 4 * mm + r}")
        a(f"""
s_lshl_b32 s14, s3, 1
s_add_u32 s14, s14, {p}
s_mul_i32 s14, s14, 544
v_add_u32 v5, s14, v3
ds_write_b128 v5, v[8:11]
""")
    a("s_waitcnt lgkmcnt(0)")
    a("s_barrier")
    a(f"""
v_lshrrev_b32 v5, 5, v1
v_bfe_u32 v6, v1, 4, 1            ; rho>>4
v_cmp_eq_u32 vcc, v5, v6
v_and_b32 v7, 15, v1              ; d
v_mul_u32_u24 v5, 2176, v5        ; head*4*544
v_lshl_add_u32 v6, v7, 4, v5
v_add_u32 v7, {16 * 16}, v5
v_cndmask_b32 v5, 0, -1, vcc      ; mask
""")
    AKV, AZ = 8, 24
    for m in range(4):
        a(f"ds_read_b128 v[40:43], v6 offset:{m * 544}")
        a(f"ds_read_b128 v[44:47], v6 offset:{m * 544 + 17 * 16}")
        a(f"ds_read_b128 v[48:51], v7 offset:{m * 544}")
        a(f"ds_read_b128 v[52:55], v7 offset:{m * 544 + 17 * 16}")
        a("s_waitcnt lgkmcnt(0)")
        for q in range(4):
            a(f"v_cvt_pk_bf16_f32 v{AKV + 4 * m + q}, v{40 + 2 * q}, v{41 + 2 * q}")
            a(f"v_cvt_pk_bf16_f32 v{AZ + 4 * m + q}, v{48 + 2 * q}, v{49 + 2 * q}")
        for q in range(4):
            a(f"v_and_b32 v{AKV + 4 * m + q}, v{AKV + 4 * m + q}, v5")
            a(f"v_and_b32 v{AZ + 4 * m + q}, v{AZ + 4 * m + q}, v5")
    a("s_waitcnt vmcnt(0)")
    a("s_nop 1")
    for m in range(4):
        a(f"v_mfma_f32_32x32x16_bf16 v[64:79], {vr(AKV + 4 * m, 4)}, {vr(100 + 4 * m, 4)}, {'0' if m == 0 else 'v[64:79]'}")
    for m in range(4):
        a(f"v_mfma_f32_32x32x16_bf16 v[80:95], {vr(AZ + 4 * m, 4)}, {vr(100 + 4 * m, 4)}, {'0' if m == 0 else 'v[80:95]'}")
    a("s_nop 7"); a("s_nop 7")
    a(f"""
v_add_f32 v80, {flit(1e-6)}, v80
v_add_f32 v88, {flit(1e-6)}, v88
v_rcp_f32 v80, v80
v_rcp_f32 v88, v88
s_nop 0
""")
    for i in range(16):
        a(f"v_mul_f32 v{64 + i}, v{64 + i}, v{80 if i < 8 else 88}")
    for q in range(8):
        a(f"v_cvt_pk_bf16_f32 v{40 + q}, v{64 + 2 * q}, v{65 + 2 * q}")
    a(f"""
s_lshl_b32 s11, s10, 5
s_lshl_b32 s12, s7, 1
s_add_u32 s11, s11, s12
s_lshl_b32 s11, s11, 10
s_add_u32 s11, s11, {O_OFF}
buffer_store_dwordx4 v[40:43], v4, {sr(SRD,4)}, s11 offen
buffer_store_dwordx4 v[44:47], v4, {sr(SRD,4)}, s11 offen offset:1024
""")
    a.label("k2_exit")
    a("s_endpgm")
```

```python
from asmlib import *
from k1 import H_OFF, O_OFF, flit, LOG2E

def gen_k3(a, name="k3_kernel"):
    a.lines.append(kernel_header(name))
    S_W, S_TB2, S_KQ, S_MT, S_NT = 3, 4, 5, 6, 7
    SRD_WS, SRD_W, SRD_X, SRD_O = 32, 36, 40, 44
    S_AB, S_WB, S_NK, S_LB = 48, 49, 50, 51
    T0, T1, T2 = 56, 57, 58
    V_L, V_L16, V_WOFF, V_WA = 1, 2, 3, 4
    V_T = 8
    V_F = 32
    V_ACC = 48
    V_H = 80
    V_XIN = 144
    a(f"""
s_cmp_ge_u32 s2, 256
s_cbranch_scc1 k3_exit
s_load_dwordx16 s[8:23], s[0:1], 0
s_load_dwordx4 s[24:27], s[0:1], 64
s_load_dwordx2 s[28:29], s[0:1], 80
v_and_b32 v{V_L}, 63, v0
v_lshrrev_b32 v{V_T}, 6, v0
s_and_b32 s{T0}, s2, 7
s_lshr_b32 s{T1}, s2, 3
v_readfirstlane_b32 s{S_W}, v{V_T}
s_and_b32 s{S_MT}, s{T1}, 3
s_lshl_b32 s{T0}, s{T0}, 2
s_add_u32 s{S_MT}, s{S_MT}, s{T0}
s_lshr_b32 s{S_NT}, s{T1}, 2
s_and_b32 s{S_TB2}, s{S_W}, 1
s_lshr_b32 s{S_KQ}, s{S_W}, 1
v_lshlrev_b32 v{V_L16}, 4, v{V_L}
v_lshrrev_b32 v{V_T}, 3, v{V_L}
v_and_b32 v{V_T+1}, 7, v{V_L}
v_bfe_u32 v{V_T+2}, v{V_L}, 4, 1
v_lshlrev_b32 v{V_T+2}, 2, v{V_T+2}
v_xor_b32 v{V_T+1}, v{V_T+1}, v{V_T+2}
v_lshlrev_b32 v{V_T+1}, 4, v{V_T+1}
v_lshl_add_u32 v{V_WOFF}, v{V_T}, 10, v{V_T+1}
v_lshrrev_b32 v{V_T}, 5, v{V_L}
v_bfe_u32 v{V_T+1}, v{V_L}, 2, 2
v_lshl_add_u32 v{V_T+2}, v{V_T}, 2, v{V_T+1}
v_lshlrev_b32 v{V_T+2}, 7, v{V_T+2}
v_bfe_u32 v{V_T+3}, v{V_L}, 4, 1
v_lshlrev_b32 v{V_T+3}, 1, v{V_T+3}
v_bfe_u32 v{V_T+4}, v{V_L}, 1, 1
v_add_u32 v{V_T+3}, v{V_T+3}, v{V_T+4}
v_lshrrev_b32 v{V_T+4}, 1, v{V_T+1}
v_lshlrev_b32 v{V_T+4}, 2, v{V_T+4}
v_xor_b32 v{V_T+3}, v{V_T+3}, v{V_T+4}
v_lshl_add_u32 v{V_T+2}, v{V_T+3}, 4, v{V_T+2}
v_and_b32 v{V_T+4}, 1, v{V_L}
v_lshl_add_u32 v{V_T+2}, v{V_T+4}, 3, v{V_T+2}
s_lshl_b32 s{S_LB}, s{S_KQ}, 15
v_add_u32 v{V_WA}, s{S_LB}, v{V_T+2}
v_xor_b32 v6, 64, v{V_WA}
s_waitcnt lgkmcnt(0)
s_mov_b32 s{SRD_WS}, s28
s_mov_b32 s{SRD_WS+1}, s29
s_mov_b32 s{SRD_WS+2}, 0x10000000
s_mov_b32 s{SRD_WS+3}, 0x00020000
s_mov_b32 s{SRD_X}, s8
s_mov_b32 s{SRD_X+1}, s9
s_mov_b32 s{SRD_X+2}, 0x200000
s_mov_b32 s{SRD_X+3}, 0x00020000
s_mov_b32 s{SRD_O}, s24
s_mov_b32 s{SRD_O+1}, s25
s_mov_b32 s{SRD_O+2}, 0x200000
s_mov_b32 s{SRD_O+3}, 0x00020000
s_mov_b32 s{SRD_W+3}, 0x00020000
s_lshl_b32 s{T2}, s{S_MT}, 1
s_add_u32 s{T2}, s{T2}, s{S_TB2}          ; tb
s_cmp_eq_u32 s{S_KQ}, 3
s_cselect_b32 s{SRD_W}, s14, s22
s_cselect_b32 s{SRD_W+1}, s15, s23
s_mov_b32 s{T0}, {512*1024}
s_cselect_b32 s{SRD_W+2}, s{T0}, {1376*1024}
s_cbranch_scc1 k3_sgrp
s_mul_i32 s{S_AB}, s{T2}, {86*1024}
s_lshl_b32 s{T0}, s{S_KQ}, 15
s_add_u32 s{S_AB}, s{S_AB}, s{T0}
s_lshl_b32 s{S_WB}, s{S_KQ}, 19
s_cmp_eq_u32 s{S_KQ}, 2
s_cselect_b32 s{S_NK}, 22, 32
s_branch k3_go
k3_sgrp:
s_lshl_b32 s{S_AB}, s{T2}, 15
s_add_u32 s{S_AB}, s{S_AB}, {O_OFF}
s_mov_b32 s{S_WB}, 0
s_mov_b32 s{S_NK}, 32
k3_go:
s_lshl_b32 s{T0}, s{S_TB2}, 13
s_add_u32 s{S_WB}, s{S_WB}, s{T0}
s_lshl_b32 s{T0}, s{S_NT}, 7
s_add_u32 s{S_WB}, s{S_WB}, s{T0}
s_lshl_b32 s{T0}, s{S_TB2}, 10
s_add_u32 s{S_LB}, s{S_LB}, s{T0}
v_and_b32 v{V_T}, 31, v{V_L}
v_lshlrev_b32 v{V_T}, 10, v{V_T}
v_lshrrev_b32 v{V_T+1}, 5, v{V_L}
v_lshl_add_u32 v{V_T}, v{V_T+1}, 3, v{V_T}
s_lshl_b32 s{T0}, s{T2}, 15
s_lshl_b32 s{T1}, s{S_NT}, 7
s_add_u32 s{T0}, s{T0}, s{T1}
s_lshl_b32 s{T1}, s{S_KQ}, 5
s_add_u32 s52, s{T0}, s{T1}
v_mov_b32 v5, v{V_T}
buffer_load_dwordx2 {vr(V_XIN,2)}, v5, {sr(SRD_X,4)}, s52 offen
buffer_load_dwordx2 {vr(V_XIN+2,2)}, v5, {sr(SRD_X,4)}, s52 offen offset:16
""")
    a.vm_reset(["xin", "xin"])
    def issue_chunk(c):
        lab = a.uid("k3i")
        slot = c % 4
        for j in range(4):
            ks = 4 * c + j
            a(f"s_add_u32 m0, s{S_LB}, {slot * 8192 + j * 2048}")
            a(f"s_add_u32 s{T0}, s{S_WB}, {ks * 16 * 1024}")
            a(f"buffer_load_dwordx4 v{V_WOFF}, {sr(SRD_W,4)}, s{T0} offen lds")
            a.vm_issue(f"c{c}")
        for j in range(4):
            ks = 4 * c + j
            a(f"s_sub_u32 s{T1}, s{S_NK}, 1")
            a(f"s_min_u32 s{T1}, s{T1}, {ks}")
            a(f"s_lshl_b32 s{T1}, s{T1}, 10")
            a(f"s_add_u32 s{T0}, s{S_AB}, s{T1}")
            a(f"buffer_load_dwordx4 {vr(V_H + 16 * slot + 4 * j, 4)}, v{V_L16}, {sr(SRD_WS,4)}, s{T0} offen")
            a.vm_issue(f"c{c}")
    for c in range(3): issue_chunk(c)
    for c in range(8):
        a.wait_vm(f"c{c}")
        a("s_barrier")
        if c + 3 < 8: issue_chunk(c + 3)
        slot = c % 4
        for j in range(4):
            ks = 4 * c + j
            lab = a.uid("k3s")
            F = V_F + 8 * (j & 1)
            if ks >= 22:
                a(f"s_cmp_le_u32 s{S_NK}, {ks}")
                a(f"s_cbranch_scc1 {lab}")
            for cb in range(2):
                base = slot * 8192 + j * 2048
                if cb == 0:
                    a(f"ds_read_b64_tr_b16 {vr(F,2)}, v{V_WA} offset:{base}")
                    a(f"ds_read_b64_tr_b16 {vr(F+2,2)}, v{V_WA} offset:{base + 1024}")
                else:
                    a(f"ds_read_b64_tr_b16 {vr(F+4,2)}, v6 offset:{base}")
                    a(f"ds_read_b64_tr_b16 {vr(F+6,2)}, v6 offset:{base + 1024}")
            Hf = V_H + 16 * slot + 4 * j
            first = (ks == 0)
            a("s_waitcnt lgkmcnt(2)")
            a(f"v_mfma_f32_32x32x16_bf16 {vr(V_ACC,16)}, {vr(F,4)}, {vr(Hf,4)}, {'0' if first else vr(V_ACC,16)}")
            a("s_waitcnt lgkmcnt(0)")
            a(f"v_mfma_f32_32x32x16_bf16 {vr(V_ACC+16,16)}, {vr(F+4,4)}, {vr(Hf,4)}, {'0' if first else vr(V_ACC+16,16)}")
            a.label(lab)
    a("s_barrier")
    a("s_nop 7"); a("s_nop 7")
    a(f"""
s_lshl_b32 s{T0}, s{S_TB2}, 15
s_lshl_b32 s{T1}, s{S_KQ}, 13
s_add_u32 s{T0}, s{T0}, s{T1}
v_add_u32 v{V_T}, s{T0}, v{V_L16}
""")
    for q in range(4):
        for e in range(2):
            a(f"ds_write_b128 v{V_T}, {vr(V_ACC + 8 * q + 4 * e, 4)} offset:{q * 2048 + e * 1024}")
    a("s_waitcnt lgkmcnt(0)")
    a("s_barrier")
    a(f"""
s_lshl_b32 s{T0}, s{S_TB2}, 15
s_lshl_b32 s{T1}, s{S_KQ}, 11
s_add_u32 s{T0}, s{T0}, s{T1}
v_add_u32 v{V_T}, s{T0}, v{V_L16}
""")
    R = V_H
    for src in range(4):
        for e in range(2):
            a(f"ds_read_b128 {vr(R + 8 * src + 4 * e, 4)}, v{V_T} offset:{src * 8192 + e * 1024}")
    a("s_waitcnt lgkmcnt(0)")
    for i in range(8):
        a(f"v_add_f32 v{R + i}, v{R + i}, v{R + 8 + i}")
    for i in range(8):
        a(f"v_add_f32 v{R + i}, v{R + i}, v{R + 16 + i}")
    for i in range(8):
        a(f"v_mul_f32 v{R + 8 + i}, {flit(-LOG2E)}, v{R + i}")
    for i in range(8):
        a(f"v_exp_f32 v{R + 8 + i}, v{R + 8 + i}")
    for i in range(8):
        a(f"v_add_f32 v{R + 8 + i}, 1.0, v{R + 8 + i}")
    for i in range(8):
        a(f"v_rcp_f32 v{R + 8 + i}, v{R + 8 + i}")
    for i in range(8):
        a(f"v_mul_f32 v{R + i}, v{R + i}, v{R + 24 + i}")
    a("s_waitcnt vmcnt(0)")
    for i in range(8):
        src = V_XIN + (i >> 1)
        if i & 1: a(f"v_and_b32 v{R + 16 + i}, 0xffff0000, v{src}")
        else: a(f"v_lshlrev_b32 v{R + 16 + i}, 16, v{src}")
    for i in range(8):
        a(f"v_fma_f32 v{R + i}, v{R + i}, v{R + 8 + i}, v{R + 16 + i}")
    for q in range(4):
        a(f"v_cvt_pk_bf16_f32 v{R + 8 + q}, v{R + 2 * q}, v{R + 2 * q + 1}")
    a(f"buffer_store_dwordx2 {vr(R + 8, 2)}, v5, {sr(SRD_O,4)}, s52 offen")
    a(f"buffer_store_dwordx2 {vr(R + 10, 2)}, v5, {sr(SRD_O,4)}, s52 offen offset:16")
    a.label("k3_exit")
    a("s_endpgm")
```

```python
import sys; sys.path.insert(0, "gen")
from asmlib import *
import k1
def build(kernels=("k1",)):
    a = Asm()
    hdr = []
    kds = []
    if "k1" in kernels:
        hdr.append("; @launch kernel=k1_kernel grid=(256,1,1) block=(512,1,1) lds=163840")
        k1.gen_k1(a); kds.append(KD.format(name="k1_kernel", vgpr=256, acc=256))
    if "k2" in kernels:
        import k2
        hdr.append("; @launch kernel=k2_kernel grid=(256,1,1) block=(256,1,1) lds=16384")
        k2.gen_k2(a); kds.append(KD.format(name="k2_kernel", vgpr=128, acc=128))
    if "k3" in kernels:
        import k3
        hdr.append("; @launch kernel=k3_kernel grid=(256,1,1) block=(512,1,1) lds=163840")
        k3.gen_k3(a); kds.append(KD.format(name="k3_kernel", vgpr=256, acc=256))
    txt = "\n".join(hdr) + '\n.amdgcn_target "amdgcn-amd-amdhsa--gfx950"\n.text\n' + a.text() + '\n.section .rodata,"a"\n' + "".join(kds)
    return txt
if __name__ == "__main__":
    ks = sys.argv[2].split(",") if len(sys.argv) > 2 else ("k1",)
    if len(sys.argv) > 3 and sys.argv[3] == "stamp": k1.STAMP["on"] = True
    open(sys.argv[1], "w").write(build(ks))
```

```python
from asmlib import *
from sched import Op, Weaver
from p1 import H_OFF, O_OFF, PHIQ_OFF, KVP_OFF, flit, LOG2E
import p1
FLAG_OFF = 0x1800000
RING = 10
WO_LDS = 4 * RING * 2048
KL = WO_LDS + 65536
CNT = KL + 8704

def gen_k23(a, name="k23_kernel"):
    W = Weaver(a)
    a.lines.append(kernel_header(name))
    S_W, S_MT, S_NT = 3, 6, 7
    SRD_WS, SRD_W, SRD_X, SRD_O, SRD_D, SRD_WO = 32, 36, 40, 44, 60, 68
    S_AB, S_WB, S_NK, S_LB = 48, 49, 50, 51
    T0, T1, T2 = 56, 57, 58
    V_L, V_L16, V_WOFF, V_WA, V_WB = 1, 2, 3, 4, 5
    V_T = 6
    V_F = 16
    V_ACC = 48
    V_H = 112
    RH, D = 12, 9
    ST = p1.STAMP
    def stamp():
        if not ST["on"]: return
        k = ST["n"]; ST["n"] += 1
        a("s_memtime s[84:85]"); a("s_waitcnt lgkmcnt(0)"); a(f"s_mov_b32 s{86 + k}, s84")
    def tr_addr(base_sgpr_expr):
        a(f"""
v_lshrrev_b32 v{V_T}, 5, v{V_L}
v_bfe_u32 v{V_T+1}, v{V_L}, 2, 2
v_lshl_add_u32 v{V_T+2}, v{V_T}, 2, v{V_T+1}
v_lshlrev_b32 v{V_T+2}, 7, v{V_T+2}
v_bfe_u32 v{V_T+3}, v{V_L}, 4, 1
v_lshlrev_b32 v{V_T+3}, 1, v{V_T+3}
v_bfe_u32 v{V_T+4}, v{V_L}, 1, 1
v_add_u32 v{V_T+3}, v{V_T+3}, v{V_T+4}
v_lshrrev_b32 v{V_T+4}, 1, v{V_T+1}
v_lshlrev_b32 v{V_T+4}, 2, v{V_T+4}
v_xor_b32 v{V_T+3}, v{V_T+3}, v{V_T+4}
v_lshl_add_u32 v{V_T+2}, v{V_T+3}, 4, v{V_T+2}
v_and_b32 v{V_T+4}, 1, v{V_L}
v_lshl_add_u32 v{V_T+2}, v{V_T+4}, 3, v{V_T+2}
v_add_u32 v{V_WA}, {base_sgpr_expr}, v{V_T+2}
""")
    a(f"""
s_cmp_ge_u32 s2, 256
s_cbranch_scc1 k23_exit
s_load_dwordx16 s[8:23], s[0:1], 0
s_load_dwordx4 s[24:27], s[0:1], 64
s_load_dwordx2 s[28:29], s[0:1], 80
v_and_b32 v{V_L}, 63, v0
v_lshrrev_b32 v{V_T}, 6, v0
s_and_b32 s{T0}, s2, 7
s_lshr_b32 s{T1}, s2, 3
v_readfirstlane_b32 s{S_W}, v{V_T}
s_and_b32 s{S_MT}, s{T1}, 3
s_lshl_b32 s{T0}, s{T0}, 2
s_add_u32 s{S_MT}, s{S_MT}, s{T0}
s_lshr_b32 s{S_NT}, s{T1}, 2
v_lshlrev_b32 v{V_L16}, 4, v{V_L}
v_lshrrev_b32 v{V_T}, 3, v{V_L}
v_and_b32 v{V_T+1}, 7, v{V_L}
v_bfe_u32 v{V_T+2}, v{V_L}, 4, 1
v_lshlrev_b32 v{V_T+2}, 2, v{V_T+2}
v_xor_b32 v{V_T+1}, v{V_T+1}, v{V_T+2}
v_lshlrev_b32 v{V_T+1}, 4, v{V_T+1}
v_lshl_add_u32 v{V_WOFF}, v{V_T}, 10, v{V_T+1}
s_waitcnt lgkmcnt(0)
s_mov_b32 s{SRD_WS}, s28
s_mov_b32 s{SRD_WS+1}, s29
s_mov_b32 s{SRD_WS+2}, 0x10000000
s_mov_b32 s{SRD_WS+3}, 0x00020000
s_cmp_ge_u32 s{S_W}, 4
s_cbranch_scc1 k23_p2
""")
    ST["n"] = 0; stamp()
    a(f"""
s_mul_i32 s{S_LB}, s{S_W}, {RING * 2048}
s_mov_b32 s{SRD_W}, s22
s_mov_b32 s{SRD_W+1}, s23
s_mov_b32 s{SRD_W+2}, {1376*1024}
s_mov_b32 s{SRD_W+3}, 0x00020000
s_mul_i32 s{T0}, s{S_W}, 22
s_cmp_eq_u32 s{S_W}, 3
s_cselect_b32 s{T1}, 1, 0
s_sub_u32 s{T0}, s{T0}, s{T1}             ; ks0
s_cmp_ge_u32 s{S_W}, 2
s_cselect_b32 s{S_NK}, 21, 22
s_lshl_b32 s{T2}, s{S_MT}, 1
s_mul_i32 s{S_AB}, s{T2}, {86*1024}
s_lshl_b32 s{T1}, s{T0}, 10
s_add_u32 s{S_AB}, s{S_AB}, s{T1}
s_add_u32 s54, s{S_AB}, {86*1024}
s_lshl_b32 s{S_WB}, s{T0}, 14
s_lshl_b32 s{T0}, s{S_NT}, 7
s_add_u32 s{S_WB}, s{S_WB}, s{T0}
""")
    a.vm_reset()
    NKM = 22
    def guard(ks, fn, tag_issue=True):
        lab = None
        if ks >= 21:
            lab = a.uid("g"); a(f"s_cmp_le_u32 s{S_NK}, {ks}"); a(f"s_cbranch_scc1 {lab}")
        fn(lab is None)
        if lab: a.label(lab)
    def issue_w(ks):
        def f(count):
            for e in range(2):
                a(f"s_add_u32 m0, s{S_LB}, {(ks % RING) * 2048 + e * 1024}")
                a(f"s_add_u32 s{T0}, s{S_WB}, {ks * 16384 + e * 8192}")
                a(f"buffer_load_dwordx4 v{V_WOFF}, {sr(SRD_W,4)}, s{T0} offen lds")
                if count: a.vm_issue(f"w{ks}")
        guard(ks, f)
    def issue_h(ks):
        def f(count):
            for e in range(2):
                a(f"s_add_u32 s{T0}, s{S_AB if e == 0 else 54}, {ks * 1024}")
                a(f"buffer_load_dwordx4 {vr(V_H + 8 * (ks % RH) + 4 * e, 4)}, v{V_L16}, {sr(SRD_WS,4)}, s{T0} offen")
                if count: a.vm_issue(f"h{ks}")
        guard(ks, f)
    for ks in range(3): issue_w(ks); issue_h(ks)
    tr_addr(f"s{S_LB}")
    a(f"v_xor_b32 v{V_WB}, 64, v{V_WA}")
    for ks in range(3, D): issue_w(ks); issue_h(ks)
    def rd(ks):
        F = V_F + 8 * (ks & 1); base = (ks % RING) * 2048
        return Op([f"ds_read_b64_tr_b16 {vr(F,2)}, v{V_WA} offset:{base}", f"ds_read_b64_tr_b16 {vr(F+2,2)}, v{V_WA} offset:{base + 1024}",
                   f"ds_read_b64_tr_b16 {vr(F+4,2)}, v{V_WB} offset:{base}", f"ds_read_b64_tr_b16 {vr(F+6,2)}, v{V_WB} offset:{base + 1024}"],
                  lds=[f"k{ks}a", f"k{ks}a", f"k{ks}b", f"k{ks}b"])
    W.lds_reset()
    a.wait_vm("w0"); W.emit(rd(0))
    BAR1_AT = 4
    for ks in range(NKM):
        if ks in (1, 6, 12, 18): stamp()
        if ks == BAR1_AT: a("s_barrier")
        if ks >= 21: a(f"s_cmp_le_u32 s{S_NK}, {ks}"); a("s_cbranch_scc1 k23_done")
        if ks + 1 < NKM:
            if ks + 1 >= 21: a("s_waitcnt vmcnt(0)")
            else: a.wait_vm([f"w{ks+1}", f"h{ks}"])
            W.emit(rd(ks + 1))
        else: a("s_waitcnt vmcnt(0)")
        F = V_F + 8 * (ks & 1); Hf = V_H + 8 * (ks % RH)
        for tb in range(2):
            for cb in range(2):
                acc = V_ACC + 32 * tb + 16 * cb
                W.emit(Op(f"v_mfma_f32_32x32x16_bf16 {vr(acc,16)}, {vr(F + 4 * cb,4)}, {vr(Hf + 4 * tb,4)}, {'0' if ks == 0 else vr(acc,16)}", needs=f"k{ks}{'ab'[cb]}"))
        if ks + D < NKM: issue_w(ks + D); issue_h(ks + D)
    a.label("k23_done")
    stamp()
    a("s_waitcnt lgkmcnt(0)")
    a("s_barrier")
    a("s_nop 7"); a("s_nop 7")
    a(f"s_lshl_b32 s{T0}, s{S_W}, 14\nv_add_u32 v{V_T}, s{T0}, v{V_L16}")
    for p in range(16):
        a(f"ds_write_b128 v{V_T}, {vr(V_ACC + 4 * p, 4)} offset:{p * 1024}")
    a("s_waitcnt lgkmcnt(0)")
    a("s_barrier")
    stamp()
    a("s_branch k23_end")
    a.label("k23_p2")
    a(f"""
s_sub_u32 s4, s{S_W}, 4
s_mov_b32 s{SRD_D}, s26
s_mov_b32 s{SRD_D+1}, s27
s_mov_b32 s{SRD_D+2}, 256
s_mov_b32 s{SRD_D+3}, 0x00020000
s_lshr_b32 s46, s2, 4
s_cmp_lg_u32 s2, 0
s_cbranch_scc1 k23_nn
s_cmp_lg_u32 s4, 0
s_cbranch_scc1 k23_nn
s_memrealtime s[64:65]
s_waitcnt lgkmcnt(0)
s_or_b32 s64, s64, 1
v_mov_b32 v5, 0
v_mov_b32 v6, s64
s_mov_b64 exec, 1
buffer_store_dword v6, v5, {sr(SRD_D,4)}, 0 offen sc1
s_mov_b64 exec, -1
k23_nn:
s_and_b32 s47, s2, 15
v_min_u32 v5, 33, v{V_L}
v_lshlrev_b32 v5, 4, v5
s_lshl_b32 s10, s46, 2
s_add_u32 s10, s10, s4
s_lshl_b32 s11, s10, 4
s_add_u32 s11, s11, s47
s_lshl_b32 s11, s11, 12
s_add_u32 s11, s11, {PHIQ_OFF}
s_lshl_b32 s12, s47, 3
s_lshl_b32 s13, s4, 1
s_add_u32 s12, s12, s13
s_mul_i32 s12, s12, 544
s_add_u32 s12, s12, {KVP_OFF}
""")
    ST_n0 = ST["n"]; ST["n"] = 0; stamp()
    for p in range(2):
        for mm in range(16):
            a(f"s_add_u32 s14, s12, {mm * 69632 + p * 544}")
            a(f"buffer_load_dwordx4 {vr(16 + 64 * p + 4 * mm, 4)}, v5, {sr(SRD_WS,4)}, s14 offen")
    for q in range(4):
        a(f"buffer_load_dwordx4 {vr(160 + 4 * q, 4)}, v{V_L16}, {sr(SRD_WS,4)}, s11 offen offset:{1024 * q}")
    a(f"""
s_mov_b32 s{SRD_WO}, s14+0
""".replace("s14+0", "s14") if False else "")
    a(f"""
s_load_dwordx2 s[{SRD_WO}:{SRD_WO+1}], s[0:1], 24
s_lshl_b32 s{T1}, s4, 17
s_lshl_b32 s{T0}, s{S_NT}, 7
s_add_u32 s{T1}, s{T1}, s{T0}
s_lshl_b32 s{T2}, s4, 14
s_add_u32 s{T2}, s{T2}, {WO_LDS}
s_mov_b32 s{SRD_WO+2}, {512*1024}
s_mov_b32 s{SRD_WO+3}, 0x00020000
s_waitcnt lgkmcnt(0)
""")
    for k in range(16):
        a(f"s_add_u32 m0, s{T2}, {k * 1024}\ns_add_u32 s{T0}, s{T1}, {k * 8192}\nbuffer_load_dwordx4 v{V_WOFF}, {sr(SRD_WO,4)}, s{T0} offen lds")
    for p in range(2):
        B = 16 + 64 * p
        for mm in range(1, 16):
            a(f"s_waitcnt vmcnt({16 + 4 + (1 - p) * 16 + 15 - mm})")
            for r in range(4): a(f"v_add_f32 v{B + r}, v{B + r}, v{B + 4 * mm + r}")
        a(f"s_lshl_b32 s14, s4, 1\ns_add_u32 s14, s14, {p}\ns_mul_i32 s14, s14, 544\ns_add_u32 s14, s14, {KL}\nv_add_u32 v{V_T}, s14, v5\nds_write_b128 v{V_T}, {vr(B, 4)}")
    a(f"v_mov_b32 v{V_T}, {CNT}\nv_mov_b32 v{V_T+1}, 0\nds_write_b32 v{V_T}, v{V_T+1}")
    a("s_waitcnt vmcnt(0) lgkmcnt(0)")
    a("s_barrier")
    stamp()
    a(f"""
v_lshrrev_b32 v5, 5, v{V_L}
v_bfe_u32 v6, v{V_L}, 4, 1
v_cmp_eq_u32 vcc, v5, v6
v_and_b32 v7, 15, v{V_L}
v_mul_u32_u24 v5, 2176, v5
v_add_u32 v5, {KL}, v5
v_lshl_add_u32 v6, v7, 4, v5
v_add_u32 v7, {16 * 16}, v5
v_cndmask_b32 v5, 0, -1, vcc
""")
    AKV, AZ = 16, 32
    for m in range(4):
        R = 48 + 16 * m
        a(f"ds_read_b128 {vr(R,4)}, v6 offset:{m * 544}")
        a(f"ds_read_b128 {vr(R+4,4)}, v6 offset:{m * 544 + 17 * 16}")
        a(f"ds_read_b128 {vr(R+8,4)}, v7 offset:{m * 544}")
        a(f"ds_read_b128 {vr(R+12,4)}, v7 offset:{m * 544 + 17 * 16}")
    for m in range(4):
        R = 48 + 16 * m
        a(f"s_waitcnt lgkmcnt({12 - 4 * m})")
        for q in range(4):
            a(f"v_cvt_pk_bf16_f32 v{AKV + 4 * m + q}, v{R + 2 * q}, v{R + 1 + 2 * q}")
            a(f"v_cvt_pk_bf16_f32 v{AZ + 4 * m + q}, v{R + 8 + 2 * q}, v{R + 9 + 2 * q}")
        for q in range(4):
            a(f"v_and_b32 v{AKV + 4 * m + q}, v{AKV + 4 * m + q}, v5")
            a(f"v_and_b32 v{AZ + 4 * m + q}, v{AZ + 4 * m + q}, v5")
    a("s_nop 1")
    for m in range(4): a(f"v_mfma_f32_32x32x16_bf16 v[112:127], {vr(AKV + 4 * m, 4)}, {vr(160 + 4 * m, 4)}, {'0' if m == 0 else 'v[112:127]'}")
    for m in range(4): a(f"v_mfma_f32_32x32x16_bf16 v[128:143], {vr(AZ + 4 * m, 4)}, {vr(160 + 4 * m, 4)}, {'0' if m == 0 else 'v[128:143]'}")
    a(f"v_mov_b32 v5, 0\nbuffer_load_dword v8, v5, {sr(SRD_D,4)}, 0 offen sc1")
    a("s_nop 7"); a("s_nop 7")
    a(f"v_add_f32 v128, {flit(1e-6)}, v128\nv_add_f32 v136, {flit(1e-6)}, v136\nv_rcp_f32 v128, v128\nv_rcp_f32 v136, v136\ns_nop 0")
    for i in range(16): a(f"v_mul_f32 v{112 + i}, v{112 + i}, v{128 if i < 8 else 136}")
    for q in range(8): a(f"v_cvt_pk_bf16_f32 v{48 + q}, v{112 + 2 * q}, v{113 + 2 * q}")
    a(f"""
s_lshl_b32 s11, s10, 5
s_lshl_b32 s12, s47, 1
s_add_u32 s11, s11, s12
s_lshl_b32 s11, s11, 10
s_add_u32 s11, s11, {O_OFF}
buffer_store_dwordx4 v[48:51], v{V_L16}, {sr(SRD_WS,4)}, s11 offen sc1
buffer_store_dwordx4 v[52:55], v{V_L16}, {sr(SRD_WS,4)}, s11 offen offset:1024 sc1
s_waitcnt vmcnt(0)
k23_nonce:
v_readfirstlane_b32 s53, v8
s_cmp_lg_u32 s53, 0
s_cbranch_scc1 k23_nonceok
s_sleep 4
buffer_load_dword v8, v5, {sr(SRD_D,4)}, 0 offen sc1
s_waitcnt vmcnt(0)
s_branch k23_nonce
k23_nonceok:
v_mov_b32 v6, {CNT}
v_mov_b32 v7, 1
s_mov_b64 exec, 1
ds_add_rtn_u32 v9, v6, v7
s_waitcnt lgkmcnt(0)
s_mov_b64 exec, -1
v_readfirstlane_b32 s12, v9
s_cmp_lg_u32 s12, 3
s_cbranch_scc1 k23_p2done
s_lshl_b32 s13, s2, 7
s_add_u32 s13, s13, {FLAG_OFF}
s_mov_b64 exec, 1
buffer_store_dword v8, v5, {sr(SRD_WS,4)}, s13 offen sc1
s_mov_b64 exec, -1
k23_p2done:
""")
    stamp()
    a(f"""
s_and_b32 s{T0}, s4, 1
s_lshl_b32 s{T0}, s{T0}, 6
""")
    tr_addr(f"{WO_LDS}")
    a(f"""
v_xor_b32 v{V_WA}, s{T0}, v{V_WA}
v_and_b32 v{V_T+2}, 31, v{V_L}
v_lshlrev_b32 v{V_T+2}, 10, v{V_T+2}
v_lshrrev_b32 v{V_T+3}, 5, v{V_L}
v_lshl_add_u32 v{V_WB}, v{V_T+3}, 3, v{V_T+2}
s_mov_b32 s{SRD_X}, s8
s_mov_b32 s{SRD_X+1}, s9
s_mov_b32 s{SRD_X+2}, 0x200000
s_mov_b32 s{SRD_X+3}, 0x00020000
s_mov_b32 s{SRD_O}, s24
s_mov_b32 s{SRD_O+1}, s25
s_mov_b32 s{SRD_O+2}, 0x200000
s_mov_b32 s{SRD_O+3}, 0x00020000
s_lshl_b32 s{T0}, s{S_MT}, 16
s_lshr_b32 s{T1}, s4, 1
s_lshl_b32 s{T1}, s{T1}, 15
s_add_u32 s{T0}, s{T0}, s{T1}
s_lshl_b32 s{T1}, s{S_NT}, 7
s_add_u32 s{T0}, s{T0}, s{T1}
s_and_b32 s{T1}, s4, 1
s_lshl_b32 s{T1}, s{T1}, 6
s_add_u32 s52, s{T0}, s{T1}
""")
    XIN = 192
    for g in range(4): a(f"buffer_load_dwordx2 {vr(XIN + 2 * g, 2)}, v{V_WB}, {sr(SRD_X,4)}, s52 offen offset:{16 * g}")
    a(f"""
s_lshr_b32 s{T0}, s{S_MT}, 1
s_lshl_b32 s{T0}, s{T0}, 11
s_add_u32 s{T0}, s{T0}, {FLAG_OFF}
v_and_b32 v{V_T}, 15, v{V_L}
v_lshlrev_b32 v{V_T}, 7, v{V_T}
k23_poll:
buffer_load_dword v{V_T+2}, v{V_T}, {sr(SRD_WS,4)}, s{T0} offen sc1
s_waitcnt vmcnt(0)
v_cmp_ne_u32 vcc, s53, v{V_T+2}
s_nop 1
s_cbranch_vccz k23_polled
s_sleep 4
s_branch k23_poll
k23_polled:
s_lshl_b32 s{T0}, s{S_MT}, 1
s_lshr_b32 s{T1}, s4, 1
s_add_u32 s{T0}, s{T0}, s{T1}            ; tb
s_lshl_b32 s{T0}, s{T0}, 15
s_add_u32 s{T0}, s{T0}, {O_OFF}
""")
    stamp()
    OF = 64
    for ks in range(32):
        if ks % 4 == 0 and ks: a(f"s_add_u32 s{T0}, s{T0}, 4096")
        a(f"buffer_load_dwordx4 {vr(OF + 4 * ks, 4)}, v{V_L16}, {sr(SRD_WS,4)}, s{T0} offen offset:{(ks % 4) * 1024} sc1")
    W.lds_reset()
    def rds(ks):
        F = V_F + 4 * (ks % 4)
        return Op([f"ds_read_b64_tr_b16 {vr(F,2)}, v{V_WA} offset:{ks * 2048}", f"ds_read_b64_tr_b16 {vr(F+2,2)}, v{V_WA} offset:{ks * 2048 + 1024}"], lds=[f"s{ks}", f"s{ks}"])
    for ks in range(3): W.emit(rds(ks))
    for ks in range(32):
        if ks + 3 < 32: W.emit(rds(ks + 3))
        a(f"s_waitcnt vmcnt({31 - ks})")
        W.emit(Op(f"v_mfma_f32_32x32x16_bf16 v[48:63], {vr(V_F + 4 * (ks % 4), 4)}, {vr(OF + 4 * ks, 4)}, {'0' if ks == 0 else 'v[48:63]'}", needs=f"s{ks}"))
    stamp()
    a("s_barrier")
    a("s_barrier")
    a(f"s_lshl_b32 s{T0}, s4, 12\nv_add_u32 v{V_T}, s{T0}, v{V_L16}")
    R = 64
    for src in range(4):
        for e in range(4):
            a(f"ds_read_b128 {vr(R + 16 * src + 4 * e, 4)}, v{V_T} offset:{src * 16384 + e * 1024}")
    a("s_waitcnt lgkmcnt(8)")
    for i in range(16): a(f"v_add_f32 v{R + i}, v{R + i}, v{R + 16 + i}")
    a("s_waitcnt lgkmcnt(0)")
    for i in range(16): a(f"v_add_f32 v{R + 32 + i}, v{R + 32 + i}, v{R + 48 + i}")
    for i in range(16): a(f"v_add_f32 v{R + i}, v{R + i}, v{R + 32 + i}")
    for i in range(16): a(f"v_mul_f32 v{R + 16 + i}, {flit(-LOG2E)}, v{R + i}")
    for i in range(16): a(f"v_exp_f32 v{R + 16 + i}, v{R + 16 + i}")
    for i in range(16): a(f"v_mul_f32 v{R + i}, v{R + i}, v{48 + i}")
    for i in range(16): a(f"v_add_f32 v{R + 16 + i}, 1.0, v{R + 16 + i}")
    for i in range(16): a(f"v_rcp_f32 v{R + 16 + i}, v{R + 16 + i}")
    for i in range(16):
        src = XIN + (i >> 1)
        if i & 1: a(f"v_and_b32 v{R + 32 + i}, 0xffff0000, v{src}")
        else: a(f"v_lshlrev_b32 v{R + 32 + i}, 16, v{src}")
    for i in range(16): a(f"v_fma_f32 v{R + i}, v{R + i}, v{R + 16 + i}, v{R + 32 + i}")
    for q in range(8): a(f"v_cvt_pk_bf16_f32 v{R + 16 + q}, v{R + 2 * q}, v{R + 2 * q + 1}")
    for g in range(4): a(f"buffer_store_dwordx2 {vr(R + 16 + 2 * g, 2)}, v{V_WB}, {sr(SRD_O,4)}, s52 offen offset:{16 * g}")
    stamp()
    a.label("k23_end")
    if ST["on"]:
        a(f"s_lshl_b32 s84, s2, 3\ns_add_u32 s84, s84, s{S_W}\ns_lshl_b32 s84, s84, 6\ns_add_u32 s84, s84, 0x2000000\nv_mov_b32 v{V_T+1}, 0")
        for k in range(16):
            a(f"v_mov_b32 v{V_T}, s{86 + k}")
            a(f"buffer_store_dword v{V_T}, v{V_T+1}, {sr(SRD_WS,4)}, s84 offen offset:{4 * k}")
    a.label("k23_exit")
    a("s_endpgm")
```

```python
from asmlib import *
from sched import Op, Weaver
from p1 import H_OFF, O_OFF, flit, LOG2E
import p1

def gen_k3(a, name="k3_kernel"):
    W = Weaver(a)
    a.lines.append(kernel_header(name))
    S_W, S_TB2, S_KQ, S_MT, S_NT = 3, 4, 5, 6, 7
    SRD_WS, SRD_W, SRD_X, SRD_O = 32, 36, 40, 44
    S_AB, S_WB, S_NK, S_LB = 48, 49, 50, 51
    T0, T1, T2 = 56, 57, 58
    V_L, V_L16, V_WOFF, V_WA = 1, 2, 3, 4
    V_T = 8
    V_F = 32
    V_ACC = 64
    V_H = 96
    V_XIN = 176
    NSL = 5
    a(f"""
s_cmp_ge_u32 s2, 256
s_cbranch_scc1 k3_exit
s_load_dwordx16 s[8:23], s[0:1], 0
s_load_dwordx4 s[24:27], s[0:1], 64
s_load_dwordx2 s[28:29], s[0:1], 80
v_and_b32 v{V_L}, 63, v0
v_lshrrev_b32 v{V_T}, 6, v0
s_and_b32 s{T0}, s2, 7
s_lshr_b32 s{T1}, s2, 3
v_readfirstlane_b32 s{S_W}, v{V_T}
s_and_b32 s{S_MT}, s{T1}, 3
s_lshl_b32 s{T0}, s{T0}, 2
s_add_u32 s{S_MT}, s{S_MT}, s{T0}
s_lshr_b32 s{S_NT}, s{T1}, 2
s_and_b32 s{S_TB2}, s{S_W}, 1
s_lshr_b32 s{S_KQ}, s{S_W}, 1
v_lshlrev_b32 v{V_L16}, 4, v{V_L}
v_lshrrev_b32 v{V_T}, 3, v{V_L}
v_and_b32 v{V_T+1}, 7, v{V_L}
v_bfe_u32 v{V_T+2}, v{V_L}, 4, 1
v_lshlrev_b32 v{V_T+2}, 2, v{V_T+2}
v_xor_b32 v{V_T+1}, v{V_T+1}, v{V_T+2}
v_lshlrev_b32 v{V_T+1}, 4, v{V_T+1}
v_lshl_add_u32 v{V_WOFF}, v{V_T}, 10, v{V_T+1}
s_mul_i32 s{S_LB}, s{S_KQ}, {NSL * 8192}
s_lshl_b32 s{T2}, s{S_MT}, 1
s_add_u32 s{T2}, s{T2}, s{S_TB2}          ; tb
s_waitcnt lgkmcnt(0)
s_mov_b32 s{SRD_WS}, s28
s_mov_b32 s{SRD_WS+1}, s29
s_mov_b32 s{SRD_WS+2}, 0x10000000
s_mov_b32 s{SRD_WS+3}, 0x00020000
s_mov_b32 s{SRD_W+3}, 0x00020000
s_cmp_eq_u32 s{S_KQ}, 3
s_cselect_b32 s{SRD_W}, s14, s22
s_cselect_b32 s{SRD_W+1}, s15, s23
s_mov_b32 s{T0}, {512*1024}
s_cselect_b32 s{SRD_W+2}, s{T0}, {1376*1024}
s_cbranch_scc1 k3_sgrp
s_mul_i32 s{S_AB}, s{T2}, {86*1024}
s_lshl_b32 s{T0}, s{S_KQ}, 15
s_add_u32 s{S_AB}, s{S_AB}, s{T0}
s_lshl_b32 s{S_WB}, s{S_KQ}, 19
s_cmp_eq_u32 s{S_KQ}, 2
s_cselect_b32 s{S_NK}, 22, 32
s_branch k3_go
k3_sgrp:
s_lshl_b32 s{S_AB}, s{T2}, 15
s_add_u32 s{S_AB}, s{S_AB}, {O_OFF}
s_mov_b32 s{S_WB}, 0
s_mov_b32 s{S_NK}, 32
k3_go:
s_lshl_b32 s{T0}, s{S_TB2}, 13
s_add_u32 s{S_WB}, s{S_WB}, s{T0}
s_lshl_b32 s{T0}, s{S_NT}, 7
s_add_u32 s{S_WB}, s{S_WB}, s{T0}
s_lshl_b32 s{T0}, s{S_TB2}, 10
s_add_u32 s53, s{S_LB}, s{T0}
s_sub_u32 s54, s{S_NK}, 1
""")
    a.vm_reset()
    ST = p1.STAMP
    def stamp():
        if not ST["on"]: return
        k = ST["n"]; ST["n"] += 1
        a("s_memtime s[84:85]"); a("s_waitcnt lgkmcnt(0)"); a(f"s_mov_b32 s{86 + k}, s84")
    ST["n"] = 0; stamp()
    def issue_chunk(c):
        lab = None
        if c >= 6:
            lab = a.uid("k3i")
            a(f"s_cmp_le_u32 s{S_NK}, {4 * c}"); a(f"s_cbranch_scc1 {lab}")
        slot = c % NSL
        for j in range(4):
            ks = 4 * c + j
            a(f"s_add_u32 m0, s53, {slot * 8192 + j * 2048}")
            a(f"s_add_u32 s{T0}, s{S_WB}, {ks * 16 * 1024}")
            a(f"buffer_load_dwordx4 v{V_WOFF}, {sr(SRD_W,4)}, s{T0} offen lds")
            if lab is None: a.vm_issue(f"c{c}")
            if ks >= 20:
                a(f"s_min_u32 s{T1}, s54, {ks}\ns_lshl_b32 s{T1}, s{T1}, 10\ns_add_u32 s{T0}, s{S_AB}, s{T1}")
            else:
                a(f"s_add_u32 s{T0}, s{S_AB}, {ks * 1024}")
            a(f"buffer_load_dwordx4 {vr(V_H + 16 * slot + 4 * j, 4)}, v{V_L16}, {sr(SRD_WS,4)}, s{T0} offen")
            if lab is None: a.vm_issue(f"c{c}")
        if lab: a.label(lab)
    issue_chunk(0); issue_chunk(1)
    a(f"""
v_lshrrev_b32 v{V_T}, 5, v{V_L}
v_bfe_u32 v{V_T+1}, v{V_L}, 2, 2
v_lshl_add_u32 v{V_T+2}, v{V_T}, 2, v{V_T+1}
v_lshlrev_b32 v{V_T+2}, 7, v{V_T+2}
v_bfe_u32 v{V_T+3}, v{V_L}, 4, 1
v_lshlrev_b32 v{V_T+3}, 1, v{V_T+3}
v_bfe_u32 v{V_T+4}, v{V_L}, 1, 1
v_add_u32 v{V_T+3}, v{V_T+3}, v{V_T+4}
v_lshrrev_b32 v{V_T+4}, 1, v{V_T+1}
v_lshlrev_b32 v{V_T+4}, 2, v{V_T+4}
v_xor_b32 v{V_T+3}, v{V_T+3}, v{V_T+4}
v_lshl_add_u32 v{V_T+2}, v{V_T+3}, 4, v{V_T+2}
v_and_b32 v{V_T+4}, 1, v{V_L}
v_lshl_add_u32 v{V_T+2}, v{V_T+4}, 3, v{V_T+2}
v_add_u32 v{V_WA}, s{S_LB}, v{V_T+2}
v_xor_b32 v6, 64, v{V_WA}
s_mov_b32 s{SRD_X}, s8
s_mov_b32 s{SRD_X+1}, s9
s_mov_b32 s{SRD_X+2}, 0x200000
s_mov_b32 s{SRD_X+3}, 0x00020000
s_mov_b32 s{SRD_O}, s24
s_mov_b32 s{SRD_O+1}, s25
s_mov_b32 s{SRD_O+2}, 0x200000
s_mov_b32 s{SRD_O+3}, 0x00020000
v_and_b32 v{V_T}, 31, v{V_L}
v_lshlrev_b32 v{V_T}, 10, v{V_T}
v_lshrrev_b32 v{V_T+1}, 5, v{V_L}
v_lshl_add_u32 v5, v{V_T+1}, 3, v{V_T}
s_lshl_b32 s{T0}, s{T2}, 15
s_lshl_b32 s{T1}, s{S_NT}, 7
s_add_u32 s{T0}, s{T0}, s{T1}
s_lshl_b32 s{T1}, s{S_KQ}, 5
s_add_u32 s52, s{T0}, s{T1}
""")
    issue_chunk(2)
    a(f"buffer_load_dwordx2 {vr(V_XIN,2)}, v5, {sr(SRD_X,4)}, s52 offen"); a.vm_issue("xin")
    a(f"buffer_load_dwordx2 {vr(V_XIN+2,2)}, v5, {sr(SRD_X,4)}, s52 offen offset:16"); a.vm_issue("xin")
    def rd(ks):
        c, j = divmod(ks, 4); slot = c % NSL
        F = V_F + 8 * (ks % 4); base = slot * 8192 + j * 2048
        return Op([f"ds_read_b64_tr_b16 {vr(F,2)}, v{V_WA} offset:{base}", f"ds_read_b64_tr_b16 {vr(F+2,2)}, v{V_WA} offset:{base + 1024}",
                   f"ds_read_b64_tr_b16 {vr(F+4,2)}, v6 offset:{base}", f"ds_read_b64_tr_b16 {vr(F+6,2)}, v6 offset:{base + 1024}"],
                  lds=[f"k{ks}a", f"k{ks}a", f"k{ks}b", f"k{ks}b"])
    for c in range(8):
        if c < 6: a.wait_vm(f"c{c}")
        else:
            a("s_waitcnt vmcnt(0)")
        a("s_barrier")
        stamp()
        if c == 0: issue_chunk(3)
        if c + 4 < 8: issue_chunk(c + 4)
        lab_end = None
        if c >= 5:
            pass
        for j in range(4):
            if j < 2: W.emit(rd(4 * c + j))
        for j in range(4):
            ks = 4 * c + j
            if j + 2 < 4: W.emit(rd(ks + 2))
            F = V_F + 8 * (ks % 4); Hf = V_H + 16 * (c % NSL) + 4 * j
            first = (ks == 0)
            lab = None
            if ks >= 22:
                lab = a.uid("k3s")
                a(f"s_cmp_le_u32 s{S_NK}, {ks}"); a(f"s_cbranch_scc1 {lab}")
            W.emit(Op(f"v_mfma_f32_32x32x16_bf16 {vr(V_ACC,16)}, {vr(F,4)}, {vr(Hf,4)}, {'0' if first else vr(V_ACC,16)}", needs=f"k{ks}a"))
            W.emit(Op(f"v_mfma_f32_32x32x16_bf16 {vr(V_ACC+16,16)}, {vr(F+4,4)}, {vr(Hf,4)}, {'0' if first else vr(V_ACC+16,16)}", needs=f"k{ks}b"))
            if lab:
                a.label(lab)
                W.ldone = min(W.ldone, max(i for i, t in enumerate(W.lq) if t == f"k{ks-1}b") + 1 if any(t == f"k{ks-1}b" for t in W.lq) else 0)
    a("s_waitcnt lgkmcnt(0)")
    a("s_barrier")
    stamp()
    a("s_nop 7"); a("s_nop 7")
    a(f"""
s_lshl_b32 s{T0}, s{S_TB2}, 15
s_lshl_b32 s{T1}, s{S_KQ}, 13
s_add_u32 s{T0}, s{T0}, s{T1}
v_add_u32 v{V_T}, s{T0}, v{V_L16}
""")
    for q in range(4):
        lab = a.uid("k3w")
        a(f"s_cmp_eq_u32 s{S_KQ}, {q}"); a(f"s_cbranch_scc1 {lab}")
        for e in range(2):
            a(f"ds_write_b128 v{V_T}, {vr(V_ACC + 8 * q + 4 * e, 4)} offset:{q * 2048 + e * 1024}")
        a.label(lab)
    a("s_waitcnt lgkmcnt(0)")
    a("s_barrier")
    a(f"""
s_lshl_b32 s{T0}, s{S_TB2}, 15
s_lshl_b32 s{T1}, s{S_KQ}, 11
s_add_u32 s{T0}, s{T0}, s{T1}
v_add_u32 v{V_T}, s{T0}, v{V_L16}
""")
    R = V_H
    for src in range(4):
        lab = a.uid("k3r")
        a(f"s_cmp_eq_u32 s{S_KQ}, {src}"); a(f"s_cbranch_scc1 {lab}_own")
        for e in range(2):
            a(f"ds_read_b128 {vr(R + 8 * src + 4 * e, 4)}, v{V_T} offset:{src * 8192 + e * 1024}")
        a(f"s_branch {lab}_j")
        a.label(lab + "_own")
        for i in range(8): a(f"v_mov_b32 v{R + 8 * src + i}, v{V_ACC + 8 * src + i}")
        a.label(lab + "_j")
    a("s_waitcnt lgkmcnt(0)")
    for i in range(8): a(f"v_add_f32 v{R + i}, v{R + i}, v{R + 8 + i}")
    for i in range(8): a(f"v_add_f32 v{R + i}, v{R + i}, v{R + 16 + i}")
    for i in range(8): a(f"v_mul_f32 v{R + 8 + i}, {flit(-LOG2E)}, v{R + i}")
    for i in range(8): a(f"v_exp_f32 v{R + 8 + i}, v{R + 8 + i}")
    for i in range(8): a(f"v_mul_f32 v{R + i}, v{R + i}, v{R + 24 + i}")
    for i in range(8): a(f"v_add_f32 v{R + 8 + i}, 1.0, v{R + 8 + i}")
    for i in range(8): a(f"v_rcp_f32 v{R + 8 + i}, v{R + 8 + i}")
    a("s_waitcnt vmcnt(0)")
    for i in range(8):
        src = V_XIN + (i >> 1)
        if i & 1: a(f"v_and_b32 v{R + 16 + i}, 0xffff0000, v{src}")
        else: a(f"v_lshlrev_b32 v{R + 16 + i}, 16, v{src}")
    for i in range(8): a(f"v_fma_f32 v{R + i}, v{R + i}, v{R + 8 + i}, v{R + 16 + i}")
    for q in range(4): a(f"v_cvt_pk_bf16_f32 v{R + 8 + q}, v{R + 2 * q}, v{R + 2 * q + 1}")
    a(f"buffer_store_dwordx2 {vr(R + 8, 2)}, v5, {sr(SRD_O,4)}, s52 offen")
    a(f"buffer_store_dwordx2 {vr(R + 10, 2)}, v5, {sr(SRD_O,4)}, s52 offen offset:16")
    stamp()
    if ST["on"]:
        a(f"s_lshl_b32 s84, s2, 3\ns_add_u32 s84, s84, s{S_W}\ns_lshl_b32 s84, s84, 6\ns_add_u32 s84, s84, 0x2000000\nv_mov_b32 v{V_T+1}, 0")
        for k in range(16):
            a(f"v_mov_b32 v{V_T}, s{86 + k}")
            a(f"buffer_store_dword v{V_T}, v{V_T+1}, {sr(SRD_WS,4)}, s84 offen offset:{4 * k}")
    a.label("k3_exit")
    a("s_endpgm")
```

```python
from asmlib import *
from sched import Op, Weaver
import struct

def f2u(x): return struct.unpack("<I", struct.pack("<f", x))[0]
def flit(x): return "0x%08x" % f2u(x)

H_OFF, O_OFF, PHIQ_OFF, KVP_OFF = 0x0, 0x800000, 0xC00000, 0x1400000
BUF0, BUF1, MISC = 0, 65536, 131072
CSP_OFF = MISC; CSF_OFF = MISC + 5120; ST_OFF = MISC + 6144; RQ_OFF = MISC + 7168; VIMG_OFF = MISC + 8192
PHI_OFF = 0
LOG2E = 1.4426950408889634
C0 = -2.0 * 0.7978845608028654 * LOG2E
C1 = C0 * 0.044715

S_W, S_TG, S_HB, S_M, S_C = 3, 4, 5, 6, 7
S_RET = 30
SRD_X, SRD_WQ, SRD_WG, SRD_WU, SRD_WS, SRD_PHI = 32, 36, 40, 44, 48, 52
S_T0, S_T1, S_T2, S_T3 = 56, 57, 58, 59
S_TB = 60; S_XB = 65; S_W1K = 66; S_HST = 67; S_U0, S_U1 = 68, 69
S_EXC = 74; S_TB32 = 76
V_LANE = 1
V_X0, V_X1, V_WQ, V_WF = 2, 3, 4, 5
V_XA = 6; V_WA = 10
V_CSFW = 14
V_NMEAN, V_RSTD, V_IRSTD = 18, 19, 20
V_CSRD, V_CSADD, V_L16 = 21, 22, 23
V_SEL = 24; V_CSD = 28; V_ST = 32
V_T = 36; V_E = 48; V_F = 80; V_ACC2 = 96; V_ACC1 = 112; V_X = 128
V_A0 = 6; V_A1 = 32; V_C1 = 2; V_CSPR = 3; V_CLOG = 0; V_K0 = 17
LA = 3
DBG = {}
TOUCH_P3 = True
PREFETCH_X = True

STAMP = {"on": False, "n": 0}
def stamp(a):
    if not STAMP["on"]: return
    k = STAMP["n"]; STAMP["n"] += 1
    if k >= 14: return
    a("s_memtime s[84:85]"); a("s_waitcnt lgkmcnt(0)"); a(f"s_mov_b32 s{86 + k}, s84")
def stamp_rt(a, k):
    if not STAMP["on"]: return
    a("s_memrealtime s[84:85]"); a("s_waitcnt lgkmcnt(0)"); a(f"s_mov_b32 s{86 + k}, s84")
def stamp_dump(a):
    if not STAMP["on"]: return
    stamp_rt(a, 15)
    a(f"s_lshl_b32 s84, s2, 3\ns_add_u32 s84, s84, s{S_W}\ns_lshl_b32 s84, s84, 6\ns_add_u32 s84, s84, 0x2000000\nv_mov_b32 v{V_T+1}, 0")
    for k in range(16):
        a(f"v_mov_b32 v{V_T}, s{86 + k}")
        a(f"buffer_store_dword v{V_T}, v{V_T+1}, {sr(SRD_WS,4)}, s84 offen offset:{4 * k}")

def rd_ops(i, tile):
    off = (i >> 2) * 8192; F = V_F + 4 * (i % 4); wa = V_WA + (i & 3)
    return Op([f"ds_read_b64_tr_b16 {vr(F,2)}, v{wa} offset:{off}", f"ds_read_b64_tr_b16 {vr(F+2,2)}, v{wa} offset:{off+512}"],
              cost=2, lds=[f"w{tile}_{i}", f"w{tile}_{i}"])
def mfma_op(i, tile, acc, swapped):
    F = V_F + 4 * (i % 4); X = V_X + 4 * i
    A, B = (X, F) if swapped else (F, X)
    c = "0" if i == 0 else vr(acc, 16)
    return Op(f"v_mfma_f32_32x32x16_bf16 {vr(acc,16)}, {vr(A,4)}, {vr(B,4)}, {c}", needs=f"w{tile}_{i}")
def cs_op(i):
    F = V_F + 4 * (i % 4)
    c = "0" if i == 0 else vr(V_CSD, 4)
    return Op(f"v_mfma_f32_16x16x32_bf16 {vr(V_CSD,4)}, {vr(F,4)}, {vr(V_SEL,4)}, {c}", mark="cs")
def cs_write(tile):
    return Op([f"s_mov_b64 exec, {sr(S_EXC,2)}"] + [f"ds_write_b32 v{V_CSADD}, v{V_CSD + r} offset:{tile * 1024 + 16 * r}" for r in range(4)] + ["s_mov_b64 exec, -1"],
              lds=["csw"] * 4, gap=("cs", 9))

def V(s, **k): return Op(s, **k)
def TR(s, **k): return Op(s, cost=2, **k)

def ops_setcs(tile):
    T = V_T
    return [
        Op(f"ds_read_b128 {vr(T+4,4)}, v{V_CSPR} offset:{tile * 1024}", lds=["csp"]),
        V(f"v_add_f32 v{T+4}, v{T+4}, v{T+5}", needs="csp"), V(f"v_add_f32 v{T+6}, v{T+6}, v{T+7}"),
        V(f"v_add_f32 v{T+8}, v{T+4}, v{T+6}"),
        Op(f"ds_write_b32 v{V_CSFW}, v{T+8}", lds=["csf"]),
    ]
def ops_EG(tile, EG):
    T = V_T; ops = ops_setcs(tile)
    def rd(g): return Op(f"ds_read_b128 {vr(T + 4 * (g & 1), 4)}, v{V_CSRD} offset:{32 * g}", lds=[f"cs{g}"])
    ops += [rd(0), rd(1)]
    for g in range(4):
        cs = T + 4 * (g & 1); gg = T + 8; idx = [4 * g + r for r in range(4)]; tt = [EG + i for i in idx]
        for r in range(4): ops.append(V(f"v_fma_f32 v{gg + r}, v{cs + r}, v{V_NMEAN}, v{V_ACC1 + idx[r]}", needs=f"cs{g}", gap=("lastm", 14)))
        if g + 2 < 4: ops.append(rd(g + 2))
        for r in range(4): ops.append(V(f"v_mul_f32 v{tt[r]}, v{gg + r}, v{gg + r}"))
        for r in range(4): ops.append(V(f"v_fma_f32 v{tt[r]}, v{tt[r]}, v{V_C1}, v{V_K0}"))
        for r in range(4): ops.append(V(f"v_mul_f32 v{tt[r]}, v{tt[r]}, v{gg + r}"))
        for r in range(4): ops.append(TR(f"v_exp_f32 v{tt[r]}, v{tt[r]}"))
        for r in range(4): ops.append(V(f"v_fma_f32 v{tt[r]}, v{tt[r]}, v{V_IRSTD}, v{V_IRSTD}"))
        for r in range(4): ops.append(TR(f"v_rcp_f32 v{tt[r]}, v{tt[r]}"))
        for r in range(4): ops.append(V(f"v_mul_f32 v{tt[r]}, v{tt[r]}, v{gg + r}"))
    return ops
def ops_EU(tile, EG, soff_ops):
    T = V_T; ops = ops_setcs(tile) + soff_ops
    def rd(g): return Op(f"ds_read_b128 {vr(T + 4 * (g & 1), 4)}, v{V_CSRD} offset:{32 * g}", lds=[f"cs{g}"])
    ops += [rd(0), rd(1)]
    for g in range(4):
        cs = T + 4 * (g & 1); t = T + 8
        for r in range(4): ops.append(V(f"v_fma_f32 v{t + r}, v{cs + r}, v{V_NMEAN}, v{V_ACC2 + 4 * g + r}", needs=f"cs{g}", gap=("lastm", 14)))
        if g + 2 < 4: ops.append(rd(g + 2))
        for r in range(4): ops.append(V(f"v_mul_f32 v{t + r}, v{t + r}, v{EG + 4 * g + r}"))
        d = EG + 8 * (g >> 1) + 2 * (g & 1)
        ops.append(V(f"v_cvt_pk_bf16_f32 v{d}, v{t}, v{t + 1}"))
        ops.append(V(f"v_cvt_pk_bf16_f32 v{d + 1}, v{t + 2}, v{t + 3}"))
        if g & 1:
            ops.append(Op(f"buffer_store_dwordx4 {vr(EG + 8 * (g >> 1), 4)}, v{V_L16}, {sr(SRD_WS,4)}, s{S_T1} offen offset:{1024 * (g >> 1)}", vm=["hst"]))
    return ops
def ops_SM1(tile):
    T = V_T; ops = ops_setcs(tile)
    CS = V_E + 16
    for g in range(4): ops.append(Op(f"ds_read_b128 {vr(CS + 4 * g, 4)}, v{V_CSRD} offset:{32 * g}", lds=[f"cs{g}"]))
    for g in range(4):
        for r in range(4):
            i = 4 * g + r
            ops.append(V(f"v_fma_f32 v{V_ACC1 + i}, v{CS + i}, v{V_NMEAN}, v{V_ACC1 + i}", needs=f"cs{g}", gap=("lastm", 14)))
    P = T
    for q in range(8): ops.append(V(f"v_cvt_pk_bf16_f32 v{P + q}, v{V_ACC1 + 2 * q}, v{V_ACC1 + 2 * q + 1}"))
    ops.append(Op(["s_nop 1", f"v_mfma_f32_32x32x16_bf16 {vr(V_ACC1,16)}, {vr(V_A0,4)}, {vr(P,4)}, 0",
                   f"v_mfma_f32_32x32x16_bf16 {vr(V_ACC1,16)}, {vr(V_A1,4)}, {vr(P+4,4)}, {vr(V_ACC1,16)}"], cost=4, mark="pq"))
    p = lambda i: V_ACC1 + i
    mx, mn = T + 8, T + 9
    ops.append(V(f"v_max3_f32 v{mx}, v{p(0)}, v{p(1)}, v{p(2)}", gap=("pq", 14)))
    ops.append(V(f"v_min3_f32 v{mn}, v{p(0)}, v{p(1)}, v{p(2)}"))
    for i in range(3, 15, 2):
        ops.append(V(f"v_max3_f32 v{mx}, v{mx}, v{p(i)}, v{p(i+1)}"))
        ops.append(V(f"v_min3_f32 v{mn}, v{mn}, v{p(i)}, v{p(i+1)}"))
    ops.append(V(f"v_max_f32 v{mx}, v{mx}, v{p(15)}")); ops.append(V(f"v_min_f32 v{mn}, v{mn}, v{p(15)}"))
    ops.append(V(f"v_mul_f32 v{mx}, v{mx}, v{V_CLOG}")); ops.append(V(f"v_mul_f32 v{mn}, v{mn}, v{V_CLOG}"))
    for i in range(16):
        ops.append(V(f"v_fma_f32 v{V_E + i}, v{p(i)}, v{V_CLOG}, -v{mx}"))
        ops.append(V(f"v_fma_f32 v{V_E + 16 + i}, -v{p(i)}, v{V_CLOG}, v{mn}"))
    for i in range(32): ops.append(TR(f"v_exp_f32 v{V_E + i}, v{V_E + i}"))
    return ops
def ops_SM2():
    T = V_T; ops = []
    s0, s1, s2, s3 = T, T + 1, T + 2, T + 3
    ops += [V(f"v_add_f32 v{s0}, v{V_E}, v{V_E + 1}"), V(f"v_add_f32 v{s1}, v{V_E + 2}, v{V_E + 3}"),
            V(f"v_add_f32 v{s2}, v{V_E + 16}, v{V_E + 17}"), V(f"v_add_f32 v{s3}, v{V_E + 18}, v{V_E + 19}")]
    for i in range(4, 16, 2):
        ops += [V(f"v_add_f32 v{s0}, v{s0}, v{V_E + i}"), V(f"v_add_f32 v{s1}, v{s1}, v{V_E + i + 1}"),
                V(f"v_add_f32 v{s2}, v{s2}, v{V_E + 16 + i}"), V(f"v_add_f32 v{s3}, v{s3}, v{V_E + 17 + i}")]
    ops += [V(f"v_add_f32 v{s0}, v{s0}, v{s1}"), V(f"v_add_f32 v{s2}, v{s2}, v{s3}"),
            TR(f"v_rcp_f32 v{s0}, v{s0}"), TR(f"v_rcp_f32 v{s2}, v{s2}"), V("s_nop 0")]
    for i in range(16): ops.append(V(f"v_mul_f32 v{V_E + i}, v{V_E + i}, v{s0}"))
    for i in range(16, 32): ops.append(V(f"v_mul_f32 v{V_E + i}, v{V_E + i}, v{s2}"))
    for q in range(16): ops.append(V(f"v_cvt_pk_bf16_f32 v{V_E + q}, v{V_E + 2 * q}, v{V_E + 2 * q + 1}"))
    return ops
def ops_EV():
    T = V_T; l = V_LANE; ops = ops_setcs(1)
    vp = T
    ops += [V(f"v_lshrrev_b32 v{T+9}, 5, v{l}"), V(f"v_lshlrev_b32 v{T+9}, 4, v{T+9}"),
            V([f"s_lshl_b32 s{S_T0}, s{S_TG}, 7", f"s_add_u32 s{S_T0}, s{S_T0}, {RQ_OFF}", f"v_add_u32 v{T+10}, s{S_T0}, v{T+9}"], cost=3)]
    def rd(g):
        R = V_E + 16 + 8 * (g & 1)
        return Op([f"ds_read_b128 {vr(R,4)}, v{T+10} offset:{32 * g}", f"ds_read_b128 {vr(R+4,4)}, v{T+10} offset:{512 + 32 * g}"], cost=2, lds=[f"rq{g}", f"rq{g}"])
    ops += [rd(0), rd(1)]
    for g in range(4):
        R = V_E + 16 + 8 * (g & 1); Q = R + 4
        for r in range(4): ops.append(V(f"v_mul_f32 v{Q + r}, v{Q + r}, v{T + 8}", needs=f"rq{g}"))
        for r in range(4): ops.append(V(f"v_fma_f32 v{Q + r}, v{V_ACC2 + 4 * g + r}, v{R + r}, v{Q + r}", gap=("lastm", 14)))
        ops.append(V(f"v_cvt_pk_bf16_f32 v{vp + 2 * g}, v{Q}, v{Q + 1}"))
        ops.append(V(f"v_cvt_pk_bf16_f32 v{vp + 2 * g + 1}, v{Q + 2}, v{Q + 3}"))
        if g + 2 < 4: ops.append(rd(g + 2))
    ops += [V([f"s_lshl_b32 s{S_T0}, s{S_W}, 11", f"s_add_u32 s{S_T0}, s{S_T0}, {VIMG_OFF}", f"v_add_u32 v{T+9}, s{S_T0}, v{V_L16}"], cost=3),
            Op(f"ds_write_b128 v{T+9}, {vr(vp,4)}", lds=["vw"]), Op(f"ds_write_b128 v{T+9}, {vr(vp+4,4)} offset:1024", lds=["vw"])]
    return ops
def ops_KVW():
    T = V_T; l = V_LANE
    ops = [V(f"v_and_b32 v{T+9}, 31, v{l}"), V(f"v_lshlrev_b32 v{T+8}, 6, v{T+9}"), V(f"v_lshrrev_b32 v{T+9}, 5, v{l}"),
           V(f"v_lshl_add_u32 v{T+8}, v{T+9}, 11, v{T+8}"),
           V([f"s_lshl_b32 s{S_T0}, s{S_W}, 12", f"s_add_u32 s{S_T0}, s{S_T0}, {PHI_OFF}", f"v_add_u32 v{T+8}, s{S_T0}, v{T+8}"], cost=3)]
    for q in range(4): ops.append(Op(f"ds_write_b128 v{T+8}, {vr(V_E + 4 * q, 4)} offset:{16 * q}", lds=["kvw"], cost=2))
    return ops

def unit_addr(T, q):
    if T == 0: return q * 8192
    if T % 2 == 1: return q * 8192 if q < 4 else 98304 + (q - 4) * 8192
    return 32768 + q * 8192
def dma_w_units(a, T, tile, units):
    srd, voff, stride = tile
    for q in units:
        a(f"s_add_u32 m0, s{S_W1K}, {unit_addr(T, q)}")
        a(f"s_add_u32 s{S_T2}, s{S_TB + T}, {q * 64 * stride}")
        a(f"buffer_load_dwordx4 v{voff}, {sr(srd,4)}, s{S_T2} offen lds")
        a.vm_issue(f"T{T}")
def dma_op(T, tile, q):
    srd, voff, stride = tile
    return Op([f"s_add_u32 m0, s{S_W1K}, {unit_addr(T, q)}", f"s_add_u32 s{S_T2}, s{S_TB + T}, {q * 64 * stride}",
               f"buffer_load_dwordx4 v{voff}, {sr(srd,4)}, s{S_T2} offen lds"], vm=[f"T{T}"])
def dma_x(a, s):
    base = [65536, 81920, 98304, 114688, 131072, 147456, 65536, 81920][s]
    for e in range(2):
        a(f"s_lshl_b32 s{S_T3}, s{S_W1K}, 1")
        a(f"s_add_u32 m0, s{S_T3}, {base + e * 1024}")
        a(f"s_add_u32 s{S_T2}, s{S_XB}, {e * 8192 + s * 128}")
        a(f"buffer_load_dwordx4 v{V_X0 if e == 0 else V_X1}, {sr(SRD_X,4)}, s{S_T2} offen lds")
        a.vm_issue(f"x{s}")

def gen_k1(a, name="k1_kernel"):
    TQ = (SRD_WQ, V_WQ, 3072); TG = (SRD_WG, V_WF, 2752); TU = (SRD_WU, V_WF, 2752)
    W = Weaver(a)
    l = V_LANE; T = V_T
    a.lines.append(kernel_header(name))
    a(f"""
s_cmp_ge_u32 s2, 256
s_cbranch_scc1 k1_exit
s_load_dwordx16 s[8:23], s[0:1], 0
s_load_dwordx4 s[24:27], s[0:1], 64
s_load_dwordx2 s[28:29], s[0:1], 80
v_and_b32 v{l}, 63, v0
v_lshrrev_b32 v{T}, 6, v0
s_and_b32 s{S_T0}, s2, 7
s_lshr_b32 s{S_T1}, s2, 3
v_readfirstlane_b32 s{S_W}, v{T}
s_lshr_b32 s{S_T2}, s{S_T0}, 2
s_and_b32 s{S_T3}, s{S_T0}, 3
s_and_b32 s{S_M}, s{S_T1}, 7
s_lshl_b32 s{S_T2}, s{S_T2}, 3
s_add_u32 s{S_M}, s{S_M}, s{S_T2}
s_lshr_b32 s{S_T1}, s{S_T1}, 3
s_lshl_b32 s{S_T3}, s{S_T3}, 2
s_add_u32 s{S_C}, s{S_T1}, s{S_T3}
s_and_b32 s{S_TG}, s{S_W}, 3
s_lshr_b32 s{S_HB}, s{S_W}, 2
s_lshl_b32 s{S_W1K}, s{S_W}, 10
v_lshrrev_b32 v{T}, 3, v{l}
v_and_b32 v{T+1}, 7, v{l}
v_lshrrev_b32 v{T+2}, 4, v{l}
v_xor_b32 v{T+3}, v{T+1}, v{T+2}
v_lshlrev_b32 v{T+3}, 4, v{T+3}
v_lshl_add_u32 v{V_X0}, v{T}, 10, v{T+3}
v_xor_b32 v{V_X1}, 64, v{V_X0}
v_and_b32 v{T+2}, 1, v{T+2}
v_lshlrev_b32 v{T+2}, 2, v{T+2}
v_xor_b32 v{T+3}, v{T+1}, v{T+2}
v_lshlrev_b32 v{T+3}, 4, v{T+3}
v_mul_u32_u24 v{T+4}, 3072, v{T}
v_add_u32 v{V_WQ}, v{T+4}, v{T+3}
v_mul_u32_u24 v{T+4}, 2752, v{T}
v_add_u32 v{V_WF}, v{T+4}, v{T+3}
s_lshl_b32 s{S_XB}, s{S_M}, 17
s_lshl_b32 s{S_T0}, s{S_W}, 14
s_add_u32 s{S_XB}, s{S_XB}, s{S_T0}
s_lshr_b32 s{S_T1}, s{S_C}, 1
s_mul_i32 s{S_T2}, s{S_W}, {8*3072}
s_mul_i32 s{S_T3}, s{S_W}, {8*2752}
s_waitcnt lgkmcnt(0)
""")
    def srd(base, p, size):
        a(f"s_mov_b32 s{base}, s{p}\ns_mov_b32 s{base+1}, s{p+1}\ns_mov_b32 s{base+2}, {size}\ns_mov_b32 s{base+3}, 0x00020000")
    srd(SRD_X, 8, 2048 * 1024); srd(SRD_WQ, 10, 512 * 3072); srd(SRD_PHI, 12, 32 * 512)
    srd(SRD_WG, 18, 512 * 2752); srd(SRD_WU, 20, 512 * 2752); srd(SRD_WS, 28, 0x10000000)
    a(f"""
s_cmp_eq_u32 s{S_C}, 15
s_cbranch_scc1 k1_idle
s_bitcmp1_b32 s{S_C}, 0
s_cbranch_scc1 k1_ffn_setup
s_lshl_b32 s{S_T0}, s{S_T1}, 7
s_add_u32 s{S_TB+4}, s{S_T2}, s{S_T0}
s_add_u32 s{S_TB+0}, s{S_TB+4}, 1024
s_add_u32 s{S_TB+1}, s{S_TB+4}, 2048
s_add_u32 s{S_TB+2}, s{S_T3}, s{S_T0}
s_mov_b32 s{S_TB+3}, s{S_TB+2}
s_mov_b32 s{S_U0}, s{S_T1}
s_branch k1_att
k1_ffn_setup:
s_lshl_b32 s{S_U0}, s{S_T1}, 1
s_add_u32 s{S_U0}, s{S_U0}, 8
s_add_u32 s{S_U1}, s{S_U0}, 1
s_lshl_b32 s{S_T0}, s{S_U0}, 7
s_add_u32 s{S_TB+0}, s{S_T3}, s{S_T0}
s_mov_b32 s{S_TB+1}, s{S_TB+0}
s_add_u32 s{S_TB+2}, s{S_TB+0}, 128
s_mov_b32 s{S_TB+3}, s{S_TB+2}
s_branch k1_ffn
""")
    def setup_rest():
        a(f"""
v_lshlrev_b32 v{V_L16}, 4, v{l}
v_and_b32 v{T}, 31, v{l}
v_lshrrev_b32 v{T+1}, 5, v{l}
v_bfe_u32 v{T+2}, v{l}, 1, 3
v_xor_b32 v{T+2}, v{T+2}, v{T+1}
s_lshl_b32 s{S_T0}, s{S_TG}, 12
s_add_u32 s{S_T0}, s{S_T0}, 65536
v_lshlrev_b32 v{T+3}, 7, v{T}
v_add_u32 v{T+3}, s{S_T0}, v{T+3}
""")
        for i in range(4):
            a(f"s_add_u32 s{S_T1}, s{S_TG}, {i}\ns_and_b32 s{S_T1}, s{S_T1}, 3\ns_lshl_b32 s{S_T1}, s{S_T1}, 1\n"
              f"v_xor_b32 v{T+4}, s{S_T1}, v{T+2}\nv_lshl_add_u32 v{V_XA+i}, v{T+4}, 4, v{T+3}")
        a(f"""
v_bfe_u32 v{T+4}, v{l}, 2, 2
v_lshl_add_u32 v{T+5}, v{T+1}, 3, v{T+4}
v_lshlrev_b32 v{T+5}, 7, v{T+5}
v_bfe_u32 v{T+6}, v{l}, 4, 1
v_lshlrev_b32 v{T+6}, 1, v{T+6}
v_bfe_u32 v{T+7}, v{l}, 1, 1
v_add_u32 v{T+6}, v{T+6}, v{T+7}
s_lshl_b32 s{S_T0}, s{S_HB}, 2
v_add_u32 v{T+6}, s{S_T0}, v{T+6}
v_lshrrev_b32 v{T+7}, 1, v{T+4}
v_lshlrev_b32 v{T+7}, 2, v{T+7}
v_xor_b32 v{T+6}, v{T+6}, v{T+7}
v_lshl_add_u32 v{T+5}, v{T+6}, 4, v{T+5}
v_and_b32 v{T+7}, 1, v{l}
v_lshl_add_u32 v{T+5}, v{T+7}, 3, v{T+5}
""")
        for i in range(4):
            a(f"s_add_u32 s{S_T1}, s{S_TG}, {i}\ns_and_b32 s{S_T1}, s{S_T1}, 3\ns_lshl_b32 s{S_T1}, s{S_T1}, 11\nv_add_u32 v{V_WA+i}, s{S_T1}, v{T+5}")
        a(f"""
v_and_b32 v{T+4}, 15, v{l}
v_bfe_u32 v{T+6}, v{l}, 4, 1
v_cmp_eq_u32 vcc, v{T+4}, v{T+6}
v_mov_b32 v{T+7}, 0x3f803f80
v_lshrrev_b32 v{T+6}, 4, v{l}
v_cndmask_b32 v{V_SEL}, 0, v{T+7}, vcc
v_mov_b32 v{V_SEL+1}, v{V_SEL}
v_mov_b32 v{V_SEL+2}, v{V_SEL}
v_mov_b32 v{V_SEL+3}, v{V_SEL}
v_mov_b32 v{T+10}, 0x3f803f80
v_mov_b32 v{T+11}, 0x3f803f80
v_lshlrev_b32 v{T+6}, 6, v{T+6}
v_lshl_add_u32 v{T+6}, v{T+4}, 8, v{T+6}
s_lshl_b32 s{S_T0}, s{S_HB}, 9
s_lshl_b32 s{S_T1}, s{S_TG}, 2
s_add_u32 s{S_T1}, s{S_T0}, s{S_T1}
s_add_u32 s{S_T1}, s{S_T1}, {CSP_OFF}
v_add_u32 v{V_CSADD}, s{S_T1}, v{T+6}
v_lshlrev_b32 v{T+6}, 4, v{T+1}
s_lshl_b32 s{S_T1}, s{S_W}, 7
s_add_u32 s{S_T1}, s{S_T1}, {CSF_OFF}
v_add_u32 v{V_CSRD}, s{S_T1}, v{T+6}
v_lshlrev_b32 v{T+6}, 2, v{T}
v_add_u32 v{V_CSFW}, s{S_T1}, v{T+6}
s_mov_b32 s{S_EXC}, 0x00030003
s_mov_b32 s{S_EXC+1}, 0x00030003
s_mov_b32 s78, 0x0001ffff
s_mov_b32 s80, 0xffff0001
s_lshl_b32 s{S_TB32}, s{S_M}, 2
s_add_u32 s{S_TB32}, s{S_TB32}, s{S_TG}
s_mul_i32 s{S_HST}, s{S_TB32}, {86*1024}
""")

    def touch_w(tiles, t, vreg=None):
        srd_, voff, stride = tiles[t]
        wv = 4 + (t % 4)
        l2 = a.uid("pfw")
        vt = V_T + 9 if vreg is None else vreg
        a(f"""
s_cmp_lg_u32 s{S_W}, {wv}
s_cbranch_scc1 {l2}
s_and_b32 s{S_T0}, s{S_M}, 7
s_mul_i32 s{S_T0}, s{S_T0}, {64 * stride}
s_add_u32 s{S_T0}, s{S_T0}, s{S_TB + t}
s_sub_u32 s{S_T0}, s{S_T0}, {8 * wv * stride}
v_mul_u32_u24 v{vt}, {stride}, v{l}
buffer_load_dword v15, v{vt}, {sr(srd_,4)}, s{S_T0} offen
buffer_load_dword v15, v{vt}, {sr(srd_,4)}, s{S_T0} offen offset:124
{l2}:
""")
    def touch_p3w():
        l2 = a.uid("p3w")
        a(f"""
s_lshr_b32 s{S_T0}, s2, 3
s_lshr_b32 s{S_T1}, s{S_T0}, 4
s_lshl_b32 s{S_T1}, s{S_T1}, 3
s_and_b32 s{S_T0}, s{S_T0}, 7
s_add_u32 s{S_T0}, s{S_T0}, s{S_T1}
s_lshl_b32 s{S_T0}, s{S_T0}, 3
s_add_u32 s{S_T0}, s{S_T0}, s{S_W}
s_lshl_b32 s{S_T0}, s{S_T0}, 14
s_mov_b32 s99, 0x00020000
s_cmp_ge_u32 s{S_T0}, {1376*1024}
s_cbranch_scc1 {l2}_o
s_mov_b32 s96, s22
s_mov_b32 s97, s23
s_mov_b32 s98, {1376*1024}
s_branch {l2}_g
{l2}_o:
s_sub_u32 s{S_T0}, s{S_T0}, {1376*1024}
s_mov_b32 s96, s14
s_mov_b32 s97, s15
s_mov_b32 s98, {512*1024}
{l2}_g:
v_lshlrev_b32 v16, 7, v{l}
buffer_load_dword v15, v16, s[96:99], s{S_T0} offen
s_add_u32 s{S_T0}, s{S_T0}, 8192
buffer_load_dword v15, v16, s[96:99], s{S_T0} offen
""")
    def startup(tiles, att):
        a.vm_reset(); STAMP["n"] = 0; stamp(a); stamp_rt(a, 14)
        def issue_stage(s):
            dma_x(a, s)
            dma_w_units(a, 0, tiles[0], [s]); a.vm[-1] = f"T0u{s}"
        lab = a.uid("pf")
        a(f"""
s_cmp_ge_u32 s{S_W}, 4
s_cbranch_scc1 {lab}_w
s_lshr_b32 s{S_T0}, s2, 3
s_lshl_b32 s{S_T0}, s{S_T0}, 15
s_lshl_b32 s{S_T1}, s{S_W}, 13
s_add_u32 s{S_T0}, s{S_T0}, s{S_T1}
s_bfe_u32 s{S_T1}, s2, 0x10002
s_lshl_b32 s{S_T1}, s{S_T1}, 20
s_add_u32 s{S_T0}, s{S_T0}, s{S_T1}
v_lshlrev_b32 v{T}, 7, v{l}
buffer_load_dword v{V_E}, v{T}, {sr(SRD_X,4)}, s{S_T0} offen
s_branch {lab}_e
{lab}_w:
""")
        touch_w(tiles, 0)
        a(f"{lab}_e:")
        issue_stage(0)
        PRE_WAIT = True
        if att:
            a(f"""
v_bfe_u32 v{T}, v{l}, 2, 1
v_bfe_u32 v{T+1}, v{l}, 3, 2
v_and_b32 v{T+2}, 3, v{l}
v_lshl_add_u32 v{T+1}, v{T+1}, 2, v{T+2}
v_lshrrev_b32 v{T+2}, 5, v{l}
v_lshlrev_b32 v{T+2}, 2, v{T+2}
v_lshl_add_u32 v{T+2}, v{T}, 4, v{T+2}
v_lshl_add_u32 v{T+1}, v{T+2}, 4, v{T+1}
v_lshlrev_b32 v{T+1}, 1, v{T+1}
s_lshl_b32 s{S_T0}, s{S_U0}, 1
s_add_u32 s{S_T0}, s{S_T0}, s{S_HB}
s_lshl_b32 s{S_T0}, s{S_T0}, 10
""")
            for j in range(8):
                d = j if j < 4 else 8 + j - 4
                a(f"buffer_load_ushort v{V_ACC2 + 4 + j}, v{T+1}, {sr(SRD_PHI,4)}, s{S_T0} offen offset:{d * 32}")
                a.vm_issue("phi")
        setup_rest()
        a("s_waitcnt vmcnt(0)")
        a.vm_reset()
        issue_stage(1); issue_stage(2); issue_stage(3)
        lab = a.uid("su")
        a(f"s_cmp_eq_u32 s{S_HB}, 0")
        a(f"s_cbranch_scc1 {lab}_A")
        vm0 = list(a.vm); st0 = STAMP["n"]
        FS = [V_F, V_E + 16]
        def reads_ops(s):
            xoff = {0: 0, 1: 16384, 2: 32768, 3: 49152, 4: 0, 5: 16384, 6: 0, 7: 16384}[s]
            ops = []
            if s == 4: ops.append(Op([f"v_add_u32 v{V_XA+i}, 0x10000, v{V_XA+i}" for i in range(4)], cost=4))
            if s == 6: ops.append(Op([f"v_add_u32 v{V_XA+i}, 0xffff0000, v{V_XA+i}" for i in range(4)], cost=4))
            for ii in range(4):
                i = 4 * s + ii; F = FS[s & 1] + 4 * ii; off = s * 8192
                ops.append(Op([f"ds_read_b128 {vr(V_X + 4 * i, 4)}, v{V_XA + ii} offset:{xoff}",
                               f"ds_read_b64_tr_b16 {vr(F,2)}, v{V_WA + ii} offset:{off}",
                               f"ds_read_b64_tr_b16 {vr(F+2,2)}, v{V_WA + ii} offset:{off + 512}"], cost=3, lds=[f"su{i}"] * 3))
            return ops
        def dmax_ops(s):
            base = [65536, 81920, 98304, 114688, 131072, 147456, 65536, 81920][s]
            ops = []
            for e in range(2):
                ops.append(Op([f"s_lshl_b32 s{S_T3}, s{S_W1K}, 1", f"s_add_u32 m0, s{S_T3}, {base + e * 1024}", f"s_add_u32 s{S_T2}, s{S_XB}, {e * 8192 + s * 128}",
                               f"buffer_load_dwordx4 v{V_X0 if e == 0 else V_X1}, {sr(SRD_X,4)}, s{S_T2} offen lds"], cost=3, vm=[f"x{s}"]))
            return ops
        def dmaw_ops(Tt, units, tagu=False):
            ops = []
            if DBG.get('noT1') and Tt == 1: return ops
            for q in units:
                o = dma_op(Tt, tiles[Tt], q); o.cost = 3
                if tagu: o.vm = [f"T0u{q}"]
                ops.append(o)
            return ops
        def compute_slots(s, hb):
            slots = []
            for ii in range(4):
                i = 4 * s + ii; F = FS[s & 1] + 4 * ii; X = V_X + 4 * i
                sl = [Op(f"v_mfma_f32_32x32x16_bf16 {vr(V_ACC1,16)}, {vr(F,4)}, {vr(X,4)}, {'0' if i == 0 else vr(V_ACC1,16)}", needs=f"su{i}")]
                if ii == 0: sl.append(Op(f"v_mfma_f32_16x16x32_bf16 {vr(V_CSD,4)}, {vr(F,4)}, {vr(V_SEL,4)}, {'0' if i == 0 else vr(V_CSD,4)}"))
                slots.append(sl)
                sl2 = []
                for hh in range(2):
                    Bop = vr(X + 2 * hh, 2) if hb == 1 else vr(T + 10, 2)
                    D = V_ST if hh == 0 else T + 4
                    sl2.append(Op(f"v_mfma_f32_4x4x4_16b_bf16 {vr(D,4)}, {vr(X + 2 * hh, 2)}, {Bop}, {'0' if i == 0 else vr(D, 4)}"))
                if DBG.get('noST'): sl2 = []
                slots.append(sl2)
            return slots
        for hb in (1, 0):
            if hb == 0:
                a(f"s_branch {lab}_J"); a.label(lab + "_A"); a.vm_reset(vm0); STAMP["n"] = st0
            W.lds_reset()
            for s in range(9):
                eops = []
                if s < 8:
                    if DBG.get('fineS') and s in (2, 3, 4, 5, 6): stamp(a); W.all_done()
                    a.wait_vm([f"x{s}", f"T0u{s}"])
                    if DBG.get('fineS') and s in (3, 4, 5): stamp(a); W.all_done()
                    if s >= 2: W.need([f"su{4 * (s - 2) + 3}"])
                    a("s_barrier")
                    if DBG.get('fineS'):
                        if s in (2, 3, 4, 5, 6): stamp(a); W.all_done()
                    elif s in (0, 4): stamp(a); W.all_done()
                    if s == 0: touch_w(tiles, 1)
                    if s == 3: touch_w(tiles, 2)
                    if s == 6: touch_w(tiles, 3)
                    eops += reads_ops(s)
                    if s == 0: eops += dmax_ops(4) + dmaw_ops(0, [4], True) + dmax_ops(5) + dmaw_ops(0, [5], True)
                    if s == 1: eops += dmaw_ops(0, [6, 7], True)
                    if s == 2: eops += dmax_ops(6) + dmaw_ops(1, [0])
                    if s == 3: eops += dmax_ops(7) + dmaw_ops(1, [1])
                    if s == 4: eops += dmaw_ops(1, [2, 4, 5])
                    if s == 5: eops += dmaw_ops(1, [3, 6, 7])
                if s >= 1: W.weave(compute_slots(s - 1, hb), eops, 0, 7, dist=0)
                else:
                    for o in eops: W.emit(o)
        a.label(lab + "_J")
        a("s_nop 7")
        for t in cs_write(0).text: a(t)
        for r in range(4): a(f"v_add_f32 v{V_ST + r}, v{V_ST + r}, v{T + 4 + r}")
        a(f"""
v_and_b32 v{T}, 3, v{l}
v_cmp_eq_u32 vcc, 1, v{T}
v_cmp_eq_u32 s[82:83], 2, v{T}
v_cmp_eq_u32 s[70:71], 3, v{T}
s_nop 1
v_cndmask_b32 v{V_ST}, v{V_ST}, v{V_ST+1}, vcc
v_cndmask_b32 v{V_ST}, v{V_ST}, v{V_ST+2}, s[82:83]
v_cndmask_b32 v{V_ST}, v{V_ST}, v{V_ST+3}, s[70:71]
v_mov_b32 v{V_ST+1}, v{V_ST}
s_nop 1
v_permlane32_swap_b32 v{V_ST}, v{V_ST+1}
v_add_f32 v{V_ST}, v{V_ST}, v{V_ST+1}
v_and_b32 v{T}, 31, v{l}
v_lshlrev_b32 v{V_CSPR}, 4, v{T}
s_lshl_b32 s{S_T0}, s{S_TG}, 5
v_add_u32 v{T}, s{S_T0}, v{T}
v_lshlrev_b32 v{T}, 2, v{T}
v_add_u32 v{T}, {ST_OFF}, v{T}
s_lshl_b32 s{S_T0}, s{S_HB}, 9
v_add_u32 v{T+1}, s{S_T0}, v{T}
ds_write_b32 v{T+1}, v{V_ST}
s_add_u32 s{S_T0}, s{S_T0}, {CSP_OFF}
v_add_u32 v{V_CSPR}, s{S_T0}, v{V_CSPR}
""")
        a.wait_vm("T1", " lgkmcnt(0)")
        a("s_barrier")
        stamp(a)
        W.lds_reset(); W.marks["lastm"] = W.n - 100
        a(f"ds_read_b32 v{T+2}, v{T}\nds_read_b32 v{T+3}, v{T} offset:512")
        W.lq += ["st", "st"]
        for i in range(LA): W.emit(rd_ops(i, 1))
        if len(tiles) > 4: touch_w(tiles, 4, 16)
        W.need(["st"])
        a(f"""
v_mul_f32 v{T+2}, {flit(1/512)}, v{T+2}
v_mul_f32 v{T+3}, {flit(1/512)}, v{T+3}
v_fma_f32 v{T+3}, -v{T+2}, v{T+2}, v{T+3}
v_max_f32 v{T+3}, 0, v{T+3}
v_add_f32 v{T+3}, {flit(1e-5)}, v{T+3}
v_sub_f32 v{V_NMEAN}, 0, v{T+2}
v_rsq_f32 v{V_RSTD}, v{T+3}
v_mov_b32 v{V_IRSTD}, v{T+3}
s_nop 0
v_mul_f32 v{V_K0}, {flit(C0)}, v{V_RSTD}
v_mul_f32 v{V_C1}, v{V_RSTD}, v{V_RSTD}
v_mul_f32 v{V_C1}, v{V_C1}, v{V_RSTD}
v_mul_f32 v{V_C1}, {flit(C1)}, v{V_C1}
""")
        if att:
            a(f"""
v_mul_f32 v{V_CLOG}, {flit(LOG2E)}, v{V_RSTD}
v_mul_f32 v{T+4}, v{V_NMEAN}, v{V_RSTD}
ds_write_b32 v{T}, v{V_RSTD} offset:{RQ_OFF - ST_OFF}
ds_write_b32 v{T}, v{T+4} offset:{RQ_OFF - ST_OFF + 512}
v_bfe_u32 v{T+5}, v{l}, 2, 1
v_cmp_eq_u32 vcc, 0, v{T+5}
""")
            W.lq += ["rqw", "rqw"]
            a.wait_vm("phi")
            for q in range(4): a(f"v_lshl_or_b32 v{V_E+q}, v{V_ACC2+5+2*q}, 16, v{V_ACC2+4+2*q}")
            for q in range(4): a(f"v_cndmask_b32 v{V_A0+q}, 0, v{V_E+q}, vcc")
            for q in range(4): a(f"v_cndmask_b32 v{V_A1+q}, v{V_E+q}, 0, vcc")

    def step(Tn, tiles, NT, swapped, eops, mid=None):
        if DBG.get('noE'): eops = [[] for _ in eops]
        acc = V_ACC1 if Tn % 2 == 0 else V_ACC2
        last = (Tn == NT - 1)
        slots = []
        for i in range(32):
            sl = []
            if Tn % 2 == 1 and i + LA == 16: sl.append(Op([f"v_add_u32 v{V_WA+k}, 0x10000, v{V_WA+k}" for k in range(4)]))
            if i + LA < 32: sl.append(rd_ops(i + LA, Tn))
            sl.append(mfma_op(i, Tn, acc, swapped))
            if i % 4 == 0 and not DBG.get('noCS'): sl.append(cs_op(i))
            if not DBG.get('noDMA') and not last and Tn + 1 >= 2 and i < 16 and i % 2 == 1: sl.append(dma_op(Tn + 1, tiles[Tn + 1], i // 2))
            slots.append(sl)
        if mid is None:
            W.weave(slots[:30], eops[0], 0, 29)
        else:
            k = mid[0]
            W.weave(slots[:k], eops[0])
            mid[1]()
            W.weave(slots[k:30], eops[1], 0, 29 - k) if k < 30 else None
        W.emit(cs_write(Tn))
        if not last:
            for i in range(4): a(f"v_add_u32 v{V_WA+i}, 0xffff8000, v{V_WA+i}")
        n = a.vm_wait_count(f"T{Tn+1}") if not last else None
        W.wait_all_lds(f" vmcnt({min(n,63)})" if n is not None else "")
        a("s_barrier")
        stamp(a)
        if not last:
            W.emit(rd_ops(0, Tn + 1)); W.emit(rd_ops(1, Tn + 1))
        W.emit(slots[30][-1])
        if not last: W.emit(rd_ops(2, Tn + 1))
        W.emit(slots[31][-1])
        W.marks["lastm"] = W.n
        if Tn == 2 and NT == 4 and TOUCH_P3 and not DBG.get('noP3'): touch_p3w()

    def soff_ops(unit):
        return [V([f"s_lshl_b32 s{S_T1}, s{unit}, 12", f"s_lshl_b32 s{S_T2}, s{S_HB}, 11", f"s_add_u32 s{S_T1}, s{S_T1}, s{S_T2}", f"s_add_u32 s{S_T1}, s{S_T1}, s{S_HST}"], cost=2)]
    def run(ops):
        for o in ops: W.emit(o)
    def kvx():
        W.need(["kvw", "vw"])
        a("s_barrier")
        lab = a.uid("kvx")
        a(f"""
s_cmp_ge_u32 s{S_TG}, 2
s_cbranch_scc1 {lab}
v_lshrrev_b32 v{T+9}, 5, v{l}
v_bfe_u32 v{T+10}, v{l}, 2, 2
v_lshl_add_u32 v{T+10}, v{T+9}, 2, v{T+10}
v_lshlrev_b32 v{T+10}, 6, v{T+10}
v_bfe_u32 v{T+11}, v{l}, 4, 1
v_lshl_add_u32 v{T+10}, v{T+11}, 5, v{T+10}
v_and_b32 v{T+8}, 3, v{l}
v_lshl_add_u32 v{T+10}, v{T+8}, 3, v{T+10}
s_lshl_b32 s{S_T0}, s{S_TG}, 11
s_lshl_b32 s{S_T1}, s{S_HB}, 14
s_add_u32 s{S_T0}, s{S_T0}, s{S_T1}
s_add_u32 s{S_T0}, s{S_T0}, {PHI_OFF}
v_add_u32 v{T+8}, s{S_T0}, v{T+10}
v_cmp_eq_u32 vcc, s{S_TG}, v{T+11}
v_and_b32 v{T+6}, 15, v{l}
v_mul_u32_u24 v{T+9}, 17, v{T+9}
s_lshl_b32 s{S_T0}, s{S_HB}, 13
s_add_u32 s{S_T0}, s{S_T0}, {VIMG_OFF}
v_cndmask_b32 v{T+10}, 0, -1, vcc
v_cndmask_b32 v{T+6}, 16, v{T+6}, vcc
v_add_u32 v{T+7}, v{T+9}, v{T+6}
v_lshlrev_b32 v{T+7}, 4, v{T+7}
v_add_u32 v{T+9}, s{S_T0}, v{V_L16}
v_mov_b32 v{T+11}, 0x3f803f80
s_cmp_eq_u32 s{S_TG}, 0
s_cselect_b32 s82, s78, s80
s_mov_b32 s83, s82
s_lshl_b32 s{S_T1}, s{S_M}, 5
s_lshl_b32 s{S_T2}, s{S_U0}, 2
s_add_u32 s{S_T1}, s{S_T1}, s{S_T2}
s_add_u32 s{S_T1}, s{S_T1}, s{S_TG}
s_lshl_b32 s{S_T2}, s{S_HB}, 1
s_add_u32 s{S_T1}, s{S_T1}, s{S_T2}
s_mul_i32 s{S_T1}, s{S_T1}, 2176
s_add_u32 s{S_T1}, s{S_T1}, {KVP_OFF}
s_waitcnt lgkmcnt(0)
""")
        D = V_E + 16
        def rd(k):
            tgp, ks = k >> 1, k & 1
            PF = V_E + 8 * (k & 1); Bp = PF + 4
            a(f"ds_read_b64_tr_b16 {vr(PF, 2)}, v{T+8} offset:{tgp * 4096 + 1024 * ks}")
            a(f"ds_read_b64_tr_b16 {vr(PF + 2, 2)}, v{T+8} offset:{tgp * 4096 + 1024 * ks + 512}")
            a(f"ds_read_b128 {vr(Bp, 4)}, v{T+9} offset:{tgp * 2048 + 1024 * ks}")
        rd(0); rd(1)
        for k in range(8):
            PF = V_E + 8 * (k & 1); Bp = PF + 4
            a(f"s_waitcnt lgkmcnt({3 if k < 7 else 0})")
            for q in range(4): a(f"v_bfi_b32 v{Bp + q}, v{T+10}, v{Bp + q}, v{T+11}")
            a("s_nop 1")
            a(f"v_mfma_f32_32x32x16_bf16 {vr(D,16)}, {vr(PF,4)}, {vr(Bp,4)}, {'0' if k == 0 else vr(D,16)}")
            if k + 2 < 8: rd(k + 2)
        a("s_nop 7\ns_nop 7")
        a(f"s_mov_b64 exec, {sr(82,2)}")
        for g in range(4):
            a(f"buffer_store_dwordx4 {vr(D + 4 * g, 4)}, v{T+7}, {sr(SRD_WS,4)}, s{S_T1} offen offset:{544 * g}")
        a("s_mov_b64 exec, -1")
        a.label(lab)
        a("s_waitcnt lgkmcnt(0)")
        W.all_done()
    def qstore():
        a(f"""
s_lshl_b32 s{S_T1}, s{S_TB32}, 4
s_lshl_b32 s{S_T2}, s{S_U0}, 1
s_add_u32 s{S_T1}, s{S_T1}, s{S_T2}
s_add_u32 s{S_T1}, s{S_T1}, s{S_HB}
s_lshl_b32 s{S_T1}, s{S_T1}, 12
s_add_u32 s{S_T1}, s{S_T1}, {PHIQ_OFF}
""")
        for q in range(4):
            a(f"buffer_store_dwordx4 {vr(V_E + 4 * q, 4)}, v{V_L16}, {sr(SRD_WS,4)}, s{S_T1} offen offset:{1024 * q}")

    a.label("k1_att")
    tiles = [TQ, TQ, TG, TU, TQ]; NT = 5
    startup(tiles, True)
    step(1, tiles, NT, True, [ops_SM1(0)])
    step(2, tiles, NT, False, [ops_SM2() + ops_EV()])
    step(3, tiles, NT, False, [ops_EG(2, V_E + 16)])
    step(4, tiles, NT, False, [ops_EU(3, V_E + 16, soff_ops(S_U0)) + ops_KVW(), []], mid=(14, kvx))
    run(ops_SM1(4)); run(ops_SM2()); qstore()
    stamp(a); stamp_dump(a)
    a("s_endpgm")
    a.label("k1_ffn")
    tiles = [TG, TU, TG, TU]; NT = 4
    startup(tiles, False)
    step(1, tiles, NT, False, [ops_EG(0, V_E)])
    step(2, tiles, NT, False, [ops_EU(1, V_E, soff_ops(S_U0))])
    step(3, tiles, NT, False, [ops_EG(2, V_E)])
    lab = a.uid("sk")
    a(f"s_lshl_b32 s{S_T1}, s{S_U1}, 1\ns_add_u32 s{S_T1}, s{S_T1}, s{S_HB}\ns_cmp_ge_u32 s{S_T1}, 43\ns_cbranch_scc1 {lab}")
    run(ops_EU(3, V_E, soff_ops(S_U1)))
    a.label(lab)
    stamp(a); stamp_dump(a)
    a("s_endpgm")
    a.label("k1_idle")
    touch_p3w()
    a.label("k1_exit")
    a("s_endpgm")
```

```python
from asmlib import Asm

class Op:
    __slots__ = ("text", "cost", "lds", "needs", "vm", "mark", "gap", "atomic")
    def __init__(self, text, cost=1, lds=None, needs=(), vm=None, mark=None, gap=None):
        self.text = text if isinstance(text, list) else [text]
        self.cost = cost
        self.lds = lds
        self.needs = [needs] if isinstance(needs, str) else list(needs)
        self.vm = vm
        self.mark = mark
        self.gap = gap

class Weaver:
    def __init__(self, a):
        self.a = a
        self.lq = []; self.ldone = 0
        self.n = 0
        self.marks = {}
        self.tag_n = {}
    def lds_reset(self):
        self.lq = []; self.ldone = 0
    def all_done(self):
        self.ldone = len(self.lq)
    def need(self, tags):
        idx = -1
        for t in tags:
            for i in range(len(self.lq) - 1, -1, -1):
                if self.lq[i] == t:
                    idx = max(idx, i); break
        if idx < self.ldone: return
        n = len(self.lq) - 1 - idx
        n = min(n, 15)
        self.a(f"s_waitcnt lgkmcnt({n})"); self.n += 1
        self.ldone = len(self.lq) - n
    def wait_all_lds(self, extra=""):
        self.a(f"s_waitcnt{extra} lgkmcnt(0)"); self.n += 1
        self.ldone = len(self.lq)
    def emit(self, op):
        if op.needs: self.need(op.needs)
        if op.gap:
            name, k = op.gap
            d = self.n - self.marks.get(name, -10**6)
            if d < k:
                rem = k - d
                while rem > 0:
                    m = min(rem, 8)
                    self.a(f"s_nop {m - 1}"); self.n += m; rem -= m
        for t in op.text:
            self.a(t); self.n += 1
        if op.lds:
            self.lq += list(op.lds)
            for t in op.lds: self.tag_n[t] = self.n
        if op.vm:
            for t in op.vm: self.a.vm_issue(t)
        if op.mark: self.marks[op.mark] = self.n
    def issued_at(self, tag):
        return self.tag_n.get(tag, -10**9)
    def ready(self, op, dist):
        for t in op.needs:
            if self.n - self.issued_at(t) < dist: return False
        if op.gap:
            name, k = op.gap
            if self.n - self.marks.get(name, -10**9) < k: return False
        return True
    def weave(self, slots, eops, start=0, end=None, dist=22, maxper=9):
        n = len(slots)
        end = n if end is None else end
        k = 0
        for i, sl in enumerate(slots):
            for o in sl: self.emit(o)
            if start <= i < end:
                rem = sum(o.cost for o in eops[k:])
                budget = rem / (end - i)
                last = (i == end - 1)
                spent = 0.0
                while k < len(eops):
                    o = eops[k]
                    if not last:
                        if spent + o.cost * 0.5 > budget: break
                        if not self.ready(o, dist): break
                    self.emit(o); spent += o.cost; k += 1
        assert k == len(eops)
```

```python
import sys; sys.path.insert(0, "gen")
from asmlib import *
import p1 as k1
def build(kernels=("k1",), stk=""):
    a = Asm()
    hdr = []
    kds = []
    if "k1" in kernels:
        hdr.append("; @launch kernel=k1_kernel grid=(256,1,1) block=(512,1,1) lds=163840")
        k1.STAMP['on'] = stk in ('stamp', 'k1'); k1.gen_k1(a); k1.STAMP['on'] = False; kds.append(KD.format(name="k1_kernel", vgpr=256, acc=256))
    if "k2" in kernels:
        import k2
        hdr.append("; @launch kernel=k2_kernel grid=(256,1,1) block=(256,1,1) lds=16384")
        k2.gen_k2(a); kds.append(KD.format(name="k2_kernel", vgpr=128, acc=128))
    if "k3" in kernels:
        import k3
        hdr.append("; @launch kernel=k3_kernel grid=(256,1,1) block=(512,1,1) lds=163840")
        k1.STAMP['on'] = (stk == 'k3'); k3.gen_k3(a); k1.STAMP['on'] = False; kds.append(KD.format(name="k3_kernel", vgpr=256, acc=256))
    if "k23" in kernels:
        import k23
        hdr.append("; @launch kernel=k23_kernel grid=(256,1,1) block=(512,1,1) lds=163840")
        k1.STAMP['on'] = (stk == 'k23'); k23.gen_k23(a); k1.STAMP['on'] = False; kds.append(KD.format(name="k23_kernel", vgpr=256, acc=256))
    txt = "\n".join(hdr) + '\n.amdgcn_target "amdgcn-amd-amdhsa--gfx950"\n.text\n' + a.text() + '\n.section .rodata,"a"\n' + "".join(kds)
    return txt
if __name__ == "__main__":
    ks = sys.argv[2].split(",") if len(sys.argv) > 2 else ("k1",)
    STK = sys.argv[3] if len(sys.argv) > 3 else ""
    for f in sys.argv[4:]: k1.DBG[f] = True
    open(sys.argv[1], "w").write(build(ks, STK))
```

```python
from asmlib import *
from sched import Op, Weaver
from p1 import H_OFF, O_OFF, PHIQ_OFF, KVP_OFF, flit, LOG2E
import p1
FLAG_OFF = 0x1800000
RING = 10
WO_LDS = 4 * RING * 2048
KL = WO_LDS + 65536
CNT = KL + 8704

def gen_k3b(a, name="k3b_kernel"):
    W = Weaver(a)
    a.lines.append(kernel_header(name))
    S_W, S_MT, S_NT = 3, 6, 7
    SRD_WS, SRD_W, SRD_X, SRD_O, SRD_D, SRD_WO = 32, 36, 40, 44, 60, 68
    S_AB, S_WB, S_NK, S_LB = 48, 49, 50, 51
    T0, T1, T2 = 56, 57, 58
    V_L, V_L16, V_WOFF, V_WA, V_WB = 1, 2, 3, 4, 5
    V_T = 6
    V_F = 16
    V_ACC = 48
    V_H = 112
    RH, D = 12, 9
    ST = p1.STAMP
    def stamp():
        if not ST["on"]: return
        k = ST["n"]; ST["n"] += 1
        a("s_memtime s[84:85]"); a("s_waitcnt lgkmcnt(0)"); a(f"s_mov_b32 s{86 + k}, s84")
    def tr_addr(base_sgpr_expr):
        a(f"""
v_lshrrev_b32 v{V_T}, 5, v{V_L}
v_bfe_u32 v{V_T+1}, v{V_L}, 2, 2
v_lshl_add_u32 v{V_T+2}, v{V_T}, 2, v{V_T+1}
v_lshlrev_b32 v{V_T+2}, 7, v{V_T+2}
v_bfe_u32 v{V_T+3}, v{V_L}, 4, 1
v_lshlrev_b32 v{V_T+3}, 1, v{V_T+3}
v_bfe_u32 v{V_T+4}, v{V_L}, 1, 1
v_add_u32 v{V_T+3}, v{V_T+3}, v{V_T+4}
v_lshrrev_b32 v{V_T+4}, 1, v{V_T+1}
v_lshlrev_b32 v{V_T+4}, 2, v{V_T+4}
v_xor_b32 v{V_T+3}, v{V_T+3}, v{V_T+4}
v_lshl_add_u32 v{V_T+2}, v{V_T+3}, 4, v{V_T+2}
v_and_b32 v{V_T+4}, 1, v{V_L}
v_lshl_add_u32 v{V_T+2}, v{V_T+4}, 3, v{V_T+2}
v_add_u32 v{V_WA}, {base_sgpr_expr}, v{V_T+2}
""")
    a(f"""
s_cmp_ge_u32 s2, 256
s_cbranch_scc1 k3b_exit
s_load_dwordx16 s[8:23], s[0:1], 0
s_load_dwordx4 s[24:27], s[0:1], 64
s_load_dwordx2 s[28:29], s[0:1], 80
v_and_b32 v{V_L}, 63, v0
v_lshrrev_b32 v{V_T}, 6, v0
s_and_b32 s{T0}, s2, 7
s_lshr_b32 s{T1}, s2, 3
v_readfirstlane_b32 s{S_W}, v{V_T}
s_and_b32 s{S_MT}, s{T1}, 3
s_lshl_b32 s{T0}, s{T0}, 2
s_add_u32 s{S_MT}, s{S_MT}, s{T0}
s_lshr_b32 s{S_NT}, s{T1}, 2
v_lshlrev_b32 v{V_L16}, 4, v{V_L}
v_lshrrev_b32 v{V_T}, 3, v{V_L}
v_and_b32 v{V_T+1}, 7, v{V_L}
v_bfe_u32 v{V_T+2}, v{V_L}, 4, 1
v_lshlrev_b32 v{V_T+2}, 2, v{V_T+2}
v_xor_b32 v{V_T+1}, v{V_T+1}, v{V_T+2}
v_lshlrev_b32 v{V_T+1}, 4, v{V_T+1}
v_lshl_add_u32 v{V_WOFF}, v{V_T}, 10, v{V_T+1}
s_waitcnt lgkmcnt(0)
s_mov_b32 s{SRD_WS}, s28
s_mov_b32 s{SRD_WS+1}, s29
s_mov_b32 s{SRD_WS+2}, 0x10000000
s_mov_b32 s{SRD_WS+3}, 0x00020000
s_cmp_ge_u32 s{S_W}, 4
s_cbranch_scc1 k3b_p2
""")
    ST["n"] = 0; stamp()
    a(f"""
s_mul_i32 s{S_LB}, s{S_W}, {RING * 2048}
s_mov_b32 s{SRD_W}, s22
s_mov_b32 s{SRD_W+1}, s23
s_mov_b32 s{SRD_W+2}, {1376*1024}
s_mov_b32 s{SRD_W+3}, 0x00020000
s_mul_i32 s{T0}, s{S_W}, 22
s_cmp_eq_u32 s{S_W}, 3
s_cselect_b32 s{T1}, 1, 0
s_sub_u32 s{T0}, s{T0}, s{T1}             ; ks0
s_cmp_ge_u32 s{S_W}, 2
s_cselect_b32 s{S_NK}, 21, 22
s_lshl_b32 s{T2}, s{S_MT}, 1
s_mul_i32 s{S_AB}, s{T2}, {86*1024}
s_lshl_b32 s{T1}, s{T0}, 10
s_add_u32 s{S_AB}, s{S_AB}, s{T1}
s_add_u32 s54, s{S_AB}, {86*1024}
s_lshl_b32 s{S_WB}, s{T0}, 14
s_lshl_b32 s{T0}, s{S_NT}, 7
s_add_u32 s{S_WB}, s{S_WB}, s{T0}
""")
    a.vm_reset()
    NKM = 22
    def guard(ks, fn, tag_issue=True):
        lab = None
        if ks >= 21:
            lab = a.uid("g"); a(f"s_cmp_le_u32 s{S_NK}, {ks}"); a(f"s_cbranch_scc1 {lab}")
        fn(lab is None)
        if lab: a.label(lab)
    def issue_w(ks):
        def f(count):
            for e in range(2):
                a(f"s_add_u32 m0, s{S_LB}, {(ks % RING) * 2048 + e * 1024}")
                a(f"s_add_u32 s{T0}, s{S_WB}, {ks * 16384 + e * 8192}")
                a(f"buffer_load_dwordx4 v{V_WOFF}, {sr(SRD_W,4)}, s{T0} offen lds")
                if count: a.vm_issue(f"w{ks}")
        guard(ks, f)
    def issue_h(ks):
        def f(count):
            for e in range(2):
                a(f"s_add_u32 s{T0}, s{S_AB if e == 0 else 54}, {ks * 1024}")
                a(f"buffer_load_dwordx4 {vr(V_H + 8 * (ks % RH) + 4 * e, 4)}, v{V_L16}, {sr(SRD_WS,4)}, s{T0} offen")
                if count: a.vm_issue(f"h{ks}")
        guard(ks, f)
    for ks in range(3): issue_w(ks); issue_h(ks)
    tr_addr(f"s{S_LB}")
    a(f"v_xor_b32 v{V_WB}, 64, v{V_WA}")
    for ks in range(3, D): issue_w(ks); issue_h(ks)
    def rd(ks):
        F = V_F + 8 * (ks & 1); base = (ks % RING) * 2048
        return Op([f"ds_read_b64_tr_b16 {vr(F,2)}, v{V_WA} offset:{base}", f"ds_read_b64_tr_b16 {vr(F+2,2)}, v{V_WA} offset:{base + 1024}",
                   f"ds_read_b64_tr_b16 {vr(F+4,2)}, v{V_WB} offset:{base}", f"ds_read_b64_tr_b16 {vr(F+6,2)}, v{V_WB} offset:{base + 1024}"],
                  lds=[f"k{ks}a", f"k{ks}a", f"k{ks}b", f"k{ks}b"])
    W.lds_reset()
    a.wait_vm("w0"); W.emit(rd(0))
    BAR1_AT = 8
    for ks in range(NKM):
        if ks in (1, 6, 12, 18): stamp()
        if ks == BAR1_AT: a("s_barrier")
        if ks >= 21: a(f"s_cmp_le_u32 s{S_NK}, {ks}"); a("s_cbranch_scc1 k3b_done")
        if ks + 1 < NKM:
            if ks + 1 >= 21: a("s_waitcnt vmcnt(0)")
            else: a.wait_vm([f"w{ks+1}", f"h{ks}"])
            W.emit(rd(ks + 1))
        else: a("s_waitcnt vmcnt(0)")
        F = V_F + 8 * (ks & 1); Hf = V_H + 8 * (ks % RH)
        for tb in range(2):
            for cb in range(2):
                acc = V_ACC + 32 * tb + 16 * cb
                W.emit(Op(f"v_mfma_f32_32x32x16_bf16 {vr(acc,16)}, {vr(F + 4 * cb,4)}, {vr(Hf + 4 * tb,4)}, {'0' if ks == 0 else vr(acc,16)}", needs=f"k{ks}{'ab'[cb]}"))
        if ks + D < NKM: issue_w(ks + D); issue_h(ks + D)
    a.label("k3b_done")
    stamp()
    a("s_waitcnt lgkmcnt(0)")
    a("s_barrier")
    a("s_nop 7"); a("s_nop 7")
    a(f"s_lshl_b32 s{T0}, s{S_W}, 14\nv_add_u32 v{V_T}, s{T0}, v{V_L16}")
    for p in range(16):
        a(f"ds_write_b128 v{V_T}, {vr(V_ACC + 4 * p, 4)} offset:{p * 1024}")
    a("s_waitcnt lgkmcnt(0)")
    a("s_barrier")
    stamp()
    a("s_branch k3b_end")
    a.label("k3b_p2")
    a(f"""
s_sub_u32 s4, s{S_W}, 4
s_mov_b32 s{SRD_WO}, s14
s_mov_b32 s{SRD_WO+1}, s15
s_mov_b32 s{SRD_WO+2}, {512*1024}
s_mov_b32 s{SRD_WO+3}, 0x00020000
s_lshl_b32 s{T1}, s4, 17
s_lshl_b32 s{T0}, s{S_NT}, 7
s_add_u32 s{T1}, s{T1}, s{T0}
s_lshl_b32 s{T2}, s4, 14
s_add_u32 s{T2}, s{T2}, {WO_LDS}
s_lshl_b32 s46, s{S_MT}, 1
s_lshr_b32 s47, s4, 1
s_add_u32 s46, s46, s47
s_lshl_b32 s46, s46, 15
s_add_u32 s46, s46, {O_OFF}
""")
    ST_n0 = ST["n"]; ST["n"] = 0; stamp()
    OF = 64
    for k4 in range(8):
        for k in (2 * k4, 2 * k4 + 1):
            a(f"s_add_u32 m0, s{T2}, {k * 1024}\ns_add_u32 s{T0}, s{T1}, {k * 8192}\nbuffer_load_dwordx4 v{V_WOFF}, {sr(SRD_WO,4)}, s{T0} offen lds")
        for ks in range(4 * k4, 4 * k4 + 4):
            a(f"buffer_load_dwordx4 {vr(OF + 4 * ks, 4)}, v{V_L16}, {sr(SRD_WS,4)}, s46 offen offset:{(ks % 4) * 1024}")
        a("s_add_u32 s46, s46, 4096")
    a(f"""
s_and_b32 s{T0}, s4, 1
s_lshl_b32 s{T0}, s{T0}, 6
""")
    tr_addr(f"{WO_LDS}")
    a(f"""
v_xor_b32 v{V_WA}, s{T0}, v{V_WA}
v_and_b32 v{V_T+2}, 31, v{V_L}
v_lshlrev_b32 v{V_T+2}, 10, v{V_T+2}
v_lshrrev_b32 v{V_T+3}, 5, v{V_L}
v_lshl_add_u32 v{V_WB}, v{V_T+3}, 3, v{V_T+2}
s_mov_b32 s{SRD_X}, s8
s_mov_b32 s{SRD_X+1}, s9
s_mov_b32 s{SRD_X+2}, 0x200000
s_mov_b32 s{SRD_X+3}, 0x00020000
s_mov_b32 s{SRD_O}, s24
s_mov_b32 s{SRD_O+1}, s25
s_mov_b32 s{SRD_O+2}, 0x200000
s_mov_b32 s{SRD_O+3}, 0x00020000
s_lshl_b32 s{T0}, s{S_MT}, 16
s_lshr_b32 s{T1}, s4, 1
s_lshl_b32 s{T1}, s{T1}, 15
s_add_u32 s{T0}, s{T0}, s{T1}
s_lshl_b32 s{T1}, s{S_NT}, 7
s_add_u32 s{T0}, s{T0}, s{T1}
s_and_b32 s{T1}, s4, 1
s_lshl_b32 s{T1}, s{T1}, 6
s_add_u32 s52, s{T0}, s{T1}
""")
    XIN = 192
    for g in range(4): a(f"buffer_load_dwordx2 {vr(XIN + 2 * g, 2)}, v{V_WB}, {sr(SRD_X,4)}, s52 offen offset:{16 * g}")
    a("s_waitcnt vmcnt(0)")
    a("s_barrier")
    stamp()
    W.lds_reset()
    def rds(ks):
        F = V_F + 4 * (ks % 4)
        return Op([f"ds_read_b64_tr_b16 {vr(F,2)}, v{V_WA} offset:{ks * 2048}", f"ds_read_b64_tr_b16 {vr(F+2,2)}, v{V_WA} offset:{ks * 2048 + 1024}"], lds=[f"s{ks}", f"s{ks}"])
    for ks in range(3): W.emit(rds(ks))
    for ks in range(32):
        if ks + 3 < 32: W.emit(rds(ks + 3))
        W.emit(Op(f"v_mfma_f32_32x32x16_bf16 v[48:63], {vr(V_F + 4 * (ks % 4), 4)}, {vr(OF + 4 * ks, 4)}, {'0' if ks == 0 else 'v[48:63]'}", needs=f"s{ks}"))
    stamp()
    a("s_barrier")
    a("s_barrier")
    a(f"s_lshl_b32 s{T0}, s4, 12\nv_add_u32 v{V_T}, s{T0}, v{V_L16}")
    R = 64
    for src in range(4):
        for e in range(4):
            a(f"ds_read_b128 {vr(R + 16 * src + 4 * e, 4)}, v{V_T} offset:{src * 16384 + e * 1024}")
    a("s_waitcnt lgkmcnt(8)")
    for i in range(16): a(f"v_add_f32 v{R + i}, v{R + i}, v{R + 16 + i}")
    a("s_waitcnt lgkmcnt(0)")
    for i in range(16): a(f"v_add_f32 v{R + 32 + i}, v{R + 32 + i}, v{R + 48 + i}")
    for i in range(16): a(f"v_add_f32 v{R + i}, v{R + i}, v{R + 32 + i}")
    for i in range(16): a(f"v_mul_f32 v{R + 16 + i}, {flit(-LOG2E)}, v{R + i}")
    for i in range(16): a(f"v_exp_f32 v{R + 16 + i}, v{R + 16 + i}")
    for i in range(16): a(f"v_mul_f32 v{R + i}, v{R + i}, v{48 + i}")
    for i in range(16): a(f"v_add_f32 v{R + 16 + i}, 1.0, v{R + 16 + i}")
    for i in range(16): a(f"v_rcp_f32 v{R + 16 + i}, v{R + 16 + i}")
    for i in range(16):
        src = XIN + (i >> 1)
        if i & 1: a(f"v_and_b32 v{R + 32 + i}, 0xffff0000, v{src}")
        else: a(f"v_lshlrev_b32 v{R + 32 + i}, 16, v{src}")
    for i in range(16): a(f"v_fma_f32 v{R + i}, v{R + i}, v{R + 16 + i}, v{R + 32 + i}")
    for q in range(8): a(f"v_cvt_pk_bf16_f32 v{R + 16 + q}, v{R + 2 * q}, v{R + 2 * q + 1}")
    for g in range(4): a(f"buffer_store_dwordx2 {vr(R + 16 + 2 * g, 2)}, v{V_WB}, {sr(SRD_O,4)}, s52 offen offset:{16 * g}")
    stamp()
    a.label("k3b_end")
    if ST["on"]:
        a(f"s_lshl_b32 s84, s2, 3\ns_add_u32 s84, s84, s{S_W}\ns_lshl_b32 s84, s84, 6\ns_add_u32 s84, s84, 0x2000000\nv_mov_b32 v{V_T+1}, 0")
        for k in range(16):
            a(f"v_mov_b32 v{V_T}, s{86 + k}")
            a(f"buffer_store_dword v{V_T}, v{V_T+1}, {sr(SRD_WS,4)}, s84 offen offset:{4 * k}")
    a.label("k3b_exit")
    a("s_endpgm")
```

```python
from asmlib import *
from sched import Op, Weaver
import struct

def f2u(x): return struct.unpack("<I", struct.pack("<f", x))[0]
def flit(x): return "0x%08x" % f2u(x)

H_OFF, O_OFF, PHIQ_OFF, KVP_OFF = 0x0, 0x800000, 0xC00000, 0x1400000
ZP_OFF = 0x1600000; FLAGKV_OFF = 0x1700000
BUF0, BUF1, MISC = 0, 65536, 131072
CSP_OFF = MISC; CSF_OFF = MISC + 5120; ST_OFF = MISC + 6144; RQ_OFF = MISC + 7168; VIMG_OFF = MISC + 8192; CNT_OFF = MISC + 4096; KS_OFF = MISC + 8192; ZS_OFF = MISC + 24576
PHI_OFF = 0
LOG2E = 1.4426950408889634
C0 = -2.0 * 0.7978845608028654 * LOG2E
C1 = C0 * 0.044715

S_W, S_TG, S_HB, S_M, S_C = 3, 4, 5, 6, 7
S_RET = 30
SRD_X, SRD_WQ, SRD_WG, SRD_WU, SRD_WS, SRD_PHI = 32, 36, 40, 44, 48, 52
S_T0, S_T1, S_T2, S_T3 = 56, 57, 58, 59
S_TB = 60; S_XB = 65; S_W1K = 66; S_HST = 67; S_U0, S_U1 = 68, 69
S_EXC = 74; S_TB32 = 76
V_LANE = 1
V_X0, V_X1, V_WQ, V_WF = 2, 3, 4, 5
V_XA = 6; V_WA = 10
V_CSFW = 14
V_NMEAN, V_RSTD, V_IRSTD = 18, 19, 20
V_CSRD, V_CSADD, V_L16 = 21, 22, 23
V_SEL = 24; V_CSD = 28; V_ST = 32
V_T = 36; V_E = 48; V_F = 80; V_ACC2 = 96; V_ACC1 = 112; V_X = 128
V_A0 = 6; V_A1 = 32; V_C1 = 2; V_CSPR = 3; V_CLOG = 0; V_K0 = 17
LA = 3
CODE = {'total': 4096}
DBG = {}
TOUCH_P3 = True
PREFETCH_X = True

STAMP = {"on": False, "n": 0}
def stamp_init(a):
    if not STAMP["on"]: return
    a(f"s_lshl_b32 s89, s2, 3\ns_add_u32 s89, s89, s{S_W}\ns_lshl_b32 s89, s89, 6\ns_add_u32 s89, s89, 0x2000000")
def _st(a, k, instr):
    a(f"{instr} s[84:85]"); a("s_waitcnt lgkmcnt(0)")
    a(f"v_mov_b32 v15, s84\nv_mov_b32 v16, 0\nbuffer_store_dword v15, v16, {sr(SRD_WS,4)}, s89 offen offset:{4 * k}")
    a.vm_issue("stamp")
def stamp(a):
    if not STAMP["on"]: return
    k = STAMP["n"]; STAMP["n"] += 1
    if k >= 14: return
    _st(a, k, "s_memtime")
def stamp_rt(a, k):
    if not STAMP["on"]: return
    _st(a, k, "s_memrealtime")
def stamp_dump(a):
    if not STAMP["on"]: return
    stamp_rt(a, 15)

def rd_ops(i, tile):
    off = (i >> 2) * 8192; F = V_F + 4 * (i % 4); wa = V_WA + (i & 3)
    return Op([f"ds_read_b64_tr_b16 {vr(F,2)}, v{wa} offset:{off}", f"ds_read_b64_tr_b16 {vr(F+2,2)}, v{wa} offset:{off+512}"],
              cost=2, lds=[f"w{tile}_{i}", f"w{tile}_{i}"])
def mfma_op(i, tile, acc, swapped):
    F = V_F + 4 * (i % 4); X = V_X + 4 * i
    A, B = (X, F) if swapped else (F, X)
    c = "0" if i == 0 else vr(acc, 16)
    return Op(f"v_mfma_f32_32x32x16_bf16 {vr(acc,16)}, {vr(A,4)}, {vr(B,4)}, {c}", needs=f"w{tile}_{i}")
def cs_op(i):
    F = V_F + 4 * (i % 4)
    c = "0" if i == 0 else vr(V_CSD, 4)
    return Op(f"v_mfma_f32_16x16x32_bf16 {vr(V_CSD,4)}, {vr(F,4)}, {vr(V_SEL,4)}, {c}", mark="cs")
def cs_write(tile):
    return Op([f"s_mov_b64 exec, {sr(S_EXC,2)}"] + [f"ds_write_b32 v{V_CSADD}, v{V_CSD + r} offset:{(tile % 4) * 1024 + 16 * r}" for r in range(4)] + ["s_mov_b64 exec, -1"],
              lds=["csw"] * 4, gap=("cs", 9))

def V(s, **k): return Op(s, **k)
def TR(s, **k): return Op(s, cost=2, **k)

def ops_setcs(tile):
    T = V_T
    return [
        Op(f"ds_read_b128 {vr(T+4,4)}, v{V_CSPR} offset:{(tile % 4) * 1024}", lds=["csp"]),
        V(f"v_add_f32 v{T+4}, v{T+4}, v{T+5}", needs="csp"), V(f"v_add_f32 v{T+6}, v{T+6}, v{T+7}"),
        V(f"v_add_f32 v{T+8}, v{T+4}, v{T+6}"),
        Op(f"ds_write_b32 v{V_CSFW}, v{T+8}", lds=["csf"]),
    ]
def ops_EG(tile, EG):
    T = V_T; ops = ops_setcs(tile)
    def rd(g): return Op(f"ds_read_b128 {vr(T + 4 * (g & 1), 4)}, v{V_CSRD} offset:{32 * g}", lds=[f"cs{g}"])
    ops += [rd(0), rd(1)]
    for g in range(4):
        cs = T + 4 * (g & 1); gg = T + 8; idx = [4 * g + r for r in range(4)]; tt = [EG + i for i in idx]
        for r in range(4): ops.append(V(f"v_fma_f32 v{gg + r}, v{cs + r}, v{V_NMEAN}, v{V_ACC1 + idx[r]}", needs=f"cs{g}", gap=("lastm", 14)))
        if g + 2 < 4: ops.append(rd(g + 2))
        for r in range(4): ops.append(V(f"v_mul_f32 v{tt[r]}, v{gg + r}, v{gg + r}"))
        for r in range(4): ops.append(V(f"v_fma_f32 v{tt[r]}, v{tt[r]}, v{V_C1}, v{V_K0}"))
        for r in range(4): ops.append(V(f"v_mul_f32 v{tt[r]}, v{tt[r]}, v{gg + r}"))
        for r in range(4): ops.append(TR(f"v_exp_f32 v{tt[r]}, v{tt[r]}"))
        for r in range(4): ops.append(V(f"v_fma_f32 v{tt[r]}, v{tt[r]}, v{V_IRSTD}, v{V_IRSTD}"))
        for r in range(4): ops.append(TR(f"v_rcp_f32 v{tt[r]}, v{tt[r]}"))
        for r in range(4): ops.append(V(f"v_mul_f32 v{tt[r]}, v{tt[r]}, v{gg + r}"))
    return ops
def ops_EU(tile, EG, soff_ops):
    T = V_T; ops = ops_setcs(tile) + soff_ops
    def rd(g): return Op(f"ds_read_b128 {vr(T + 4 * (g & 1), 4)}, v{V_CSRD} offset:{32 * g}", lds=[f"cs{g}"])
    ops += [rd(0), rd(1)]
    for g in range(4):
        cs = T + 4 * (g & 1); t = T + 8
        for r in range(4): ops.append(V(f"v_fma_f32 v{t + r}, v{cs + r}, v{V_NMEAN}, v{V_ACC2 + 4 * g + r}", needs=f"cs{g}", gap=("lastm", 14)))
        if g + 2 < 4: ops.append(rd(g + 2))
        for r in range(4): ops.append(V(f"v_mul_f32 v{t + r}, v{t + r}, v{EG + 4 * g + r}"))
        d = EG + 8 * (g >> 1) + 2 * (g & 1)
        ops.append(V(f"v_cvt_pk_bf16_f32 v{d}, v{t}, v{t + 1}"))
        ops.append(V(f"v_cvt_pk_bf16_f32 v{d + 1}, v{t + 2}, v{t + 3}"))
        if g & 1:
            ops.append(Op(f"buffer_store_dwordx4 {vr(EG + 8 * (g >> 1), 4)}, v{V_L16}, {sr(SRD_WS,4)}, s{S_T1} offen offset:{1024 * (g >> 1)}", vm=["hst"]))
    return ops
def ops_SM1(tile):
    T = V_T; ops = ops_setcs(tile)
    CS = V_E + 16
    for g in range(4): ops.append(Op(f"ds_read_b128 {vr(CS + 4 * g, 4)}, v{V_CSRD} offset:{32 * g}", lds=[f"cs{g}"]))
    for g in range(4):
        for r in range(4):
            i = 4 * g + r
            ops.append(V(f"v_fma_f32 v{V_ACC1 + i}, v{CS + i}, v{V_NMEAN}, v{V_ACC1 + i}", needs=f"cs{g}", gap=("lastm", 14)))
    P = T
    for q in range(8): ops.append(V(f"v_cvt_pk_bf16_f32 v{P + q}, v{V_ACC1 + 2 * q}, v{V_ACC1 + 2 * q + 1}"))
    ops.append(Op(["s_nop 1", f"v_mfma_f32_32x32x16_bf16 {vr(V_ACC1,16)}, {vr(V_A0,4)}, {vr(P,4)}, 0",
                   f"v_mfma_f32_32x32x16_bf16 {vr(V_ACC1,16)}, {vr(V_A1,4)}, {vr(P+4,4)}, {vr(V_ACC1,16)}"], cost=4, mark="pq"))
    p = lambda i: V_ACC1 + i
    mx, mn = T + 8, T + 9
    ops.append(V(f"v_max3_f32 v{mx}, v{p(0)}, v{p(1)}, v{p(2)}", gap=("pq", 14)))
    ops.append(V(f"v_min3_f32 v{mn}, v{p(0)}, v{p(1)}, v{p(2)}"))
    for i in range(3, 15, 2):
        ops.append(V(f"v_max3_f32 v{mx}, v{mx}, v{p(i)}, v{p(i+1)}"))
        ops.append(V(f"v_min3_f32 v{mn}, v{mn}, v{p(i)}, v{p(i+1)}"))
    ops.append(V(f"v_max_f32 v{mx}, v{mx}, v{p(15)}")); ops.append(V(f"v_min_f32 v{mn}, v{mn}, v{p(15)}"))
    ops.append(V(f"v_mul_f32 v{mx}, v{mx}, v{V_CLOG}")); ops.append(V(f"v_mul_f32 v{mn}, v{mn}, v{V_CLOG}"))
    for i in range(16):
        ops.append(V(f"v_fma_f32 v{V_E + i}, v{p(i)}, v{V_CLOG}, -v{mx}"))
        ops.append(V(f"v_fma_f32 v{V_E + 16 + i}, -v{p(i)}, v{V_CLOG}, v{mn}"))
    for i in range(32): ops.append(TR(f"v_exp_f32 v{V_E + i}, v{V_E + i}"))
    return ops
def ops_SM2():
    T = V_T; ops = []
    s0, s1, s2, s3 = T, T + 1, T + 2, T + 3
    ops += [V(f"v_add_f32 v{s0}, v{V_E}, v{V_E + 1}"), V(f"v_add_f32 v{s1}, v{V_E + 2}, v{V_E + 3}"),
            V(f"v_add_f32 v{s2}, v{V_E + 16}, v{V_E + 17}"), V(f"v_add_f32 v{s3}, v{V_E + 18}, v{V_E + 19}")]
    for i in range(4, 16, 2):
        ops += [V(f"v_add_f32 v{s0}, v{s0}, v{V_E + i}"), V(f"v_add_f32 v{s1}, v{s1}, v{V_E + i + 1}"),
                V(f"v_add_f32 v{s2}, v{s2}, v{V_E + 16 + i}"), V(f"v_add_f32 v{s3}, v{s3}, v{V_E + 17 + i}")]
    ops += [V(f"v_add_f32 v{s0}, v{s0}, v{s1}"), V(f"v_add_f32 v{s2}, v{s2}, v{s3}"),
            TR(f"v_rcp_f32 v{s0}, v{s0}"), TR(f"v_rcp_f32 v{s2}, v{s2}"), V("s_nop 0")]
    for i in range(16): ops.append(V(f"v_mul_f32 v{V_E + i}, v{V_E + i}, v{s0}"))
    for i in range(16, 32): ops.append(V(f"v_mul_f32 v{V_E + i}, v{V_E + i}, v{s2}"))
    for q in range(16): ops.append(V(f"v_cvt_pk_bf16_f32 v{V_E + q}, v{V_E + 2 * q}, v{V_E + 2 * q + 1}"))
    return ops
def ops_EV():
    T = V_T; l = V_LANE; ops = ops_setcs(1)
    vp = T
    ops += [V(f"v_lshrrev_b32 v{T+9}, 5, v{l}"), V(f"v_lshlrev_b32 v{T+9}, 4, v{T+9}"),
            V([f"s_lshl_b32 s{S_T0}, s{S_TG}, 7", f"s_add_u32 s{S_T0}, s{S_T0}, {RQ_OFF}", f"v_add_u32 v{T+10}, s{S_T0}, v{T+9}"], cost=3)]
    def rd(g):
        R = V_E + 16 + 8 * (g & 1)
        return Op([f"ds_read_b128 {vr(R,4)}, v{T+10} offset:{32 * g}", f"ds_read_b128 {vr(R+4,4)}, v{T+10} offset:{512 + 32 * g}"], cost=2, lds=[f"rq{g}", f"rq{g}"])
    ops += [rd(0), rd(1)]
    for g in range(4):
        R = V_E + 16 + 8 * (g & 1); Q = R + 4
        for r in range(4): ops.append(V(f"v_mul_f32 v{Q + r}, v{Q + r}, v{T + 8}", needs=f"rq{g}"))
        for r in range(4): ops.append(V(f"v_fma_f32 v{Q + r}, v{V_ACC2 + 4 * g + r}, v{R + r}, v{Q + r}", gap=("lastm", 14)))
        ops.append(V(f"v_cvt_pk_bf16_f32 v{vp + 2 * g}, v{Q}, v{Q + 1}"))
        ops.append(V(f"v_cvt_pk_bf16_f32 v{vp + 2 * g + 1}, v{Q + 2}, v{Q + 3}"))
        if g + 2 < 4: ops.append(rd(g + 2))
    ops += [V([f"s_lshl_b32 s{S_T0}, s{S_W}, 11", f"s_add_u32 s{S_T0}, s{S_T0}, {VIMG_OFF}", f"v_add_u32 v{T+9}, s{S_T0}, v{V_L16}"], cost=3),
            Op(f"ds_write_b128 v{T+9}, {vr(vp,4)}", lds=["vw"]), Op(f"ds_write_b128 v{T+9}, {vr(vp+4,4)} offset:1024", lds=["vw"])]
    return ops
def ops_KVW():
    T = V_T; l = V_LANE
    ops = [V(f"v_and_b32 v{T+9}, 31, v{l}"), V(f"v_lshlrev_b32 v{T+8}, 6, v{T+9}"), V(f"v_lshrrev_b32 v{T+9}, 5, v{l}"),
           V(f"v_lshl_add_u32 v{T+8}, v{T+9}, 11, v{T+8}"),
           V([f"s_lshl_b32 s{S_T0}, s{S_W}, 12", f"s_add_u32 s{S_T0}, s{S_T0}, {PHI_OFF}", f"v_add_u32 v{T+8}, s{S_T0}, v{T+8}"], cost=3)]
    for q in range(4): ops.append(Op(f"ds_write_b128 v{T+8}, {vr(V_E + 4 * q, 4)} offset:{16 * q}", lds=["kvw"], cost=2))
    return ops

def tb(T): return S_TB + T if T < 5 else 73
def unit_addr(T, q):
    if T == 0: return q * 8192
    if T % 2 == 1: return q * 8192 if q < 4 else 98304 + (q - 4) * 8192
    return 32768 + q * 8192
def dma_w_units(a, T, tile, units):
    srd, voff, stride = tile
    for q in units:
        a(f"s_add_u32 m0, s{S_W1K}, {unit_addr(T, q)}")
        a(f"s_add_u32 s{S_T2}, s{tb(T)}, {q * 64 * stride}")
        a(f"buffer_load_dwordx4 v{voff}, {sr(srd,4)}, s{S_T2} offen lds")
        a.vm_issue(f"T{T}")
def dma_op(T, tile, q):
    srd, voff, stride = tile
    return Op([f"s_add_u32 m0, s{S_W1K}, {unit_addr(T, q)}", f"s_add_u32 s{S_T2}, s{tb(T)}, {q * 64 * stride}",
               f"buffer_load_dwordx4 v{voff}, {sr(srd,4)}, s{S_T2} offen lds"], vm=[f"T{T}"])
def dma_x(a, s):
    base = [65536, 81920, 98304, 114688, 131072, 147456, 65536, 81920][s]
    for e in range(2):
        a(f"s_lshl_b32 s{S_T3}, s{S_W1K}, 1")
        a(f"s_add_u32 m0, s{S_T3}, {base + e * 1024}")
        a(f"s_add_u32 s{S_T2}, s{S_XB}, {e * 8192 + s * 128}")
        a(f"buffer_load_dwordx4 v{V_X0 if e == 0 else V_X1}, {sr(SRD_X,4)}, s{S_T2} offen lds")
        a.vm_issue(f"x{s}")

def gen_k1(a, name="k1_kernel"):
    TQ = (SRD_WQ, V_WQ, 3072); TG = (SRD_WG, V_WF, 2752); TU = (SRD_WU, V_WF, 2752)
    W = Weaver(a)
    l = V_LANE; T = V_T
    a.lines.append(kernel_header(name))
    a(f"""
s_cmp_ge_u32 s2, 256
s_cbranch_scc1 k1_exit
s_load_dwordx16 s[8:23], s[0:1], 0
s_getpc_b64 s[90:91]
v_and_b32 v2, 63, v0
v_lshrrev_b32 v3, 6, v0
v_lshlrev_b32 v2, 7, v2
v_lshl_add_u32 v2, v3, 13, v2
v_min_u32 v2, {CODE["total"] - 64}, v2
global_load_dword v15, v2, s[90:91]
s_load_dwordx4 s[24:27], s[0:1], 64
s_load_dwordx2 s[28:29], s[0:1], 80
v_and_b32 v{l}, 63, v0
v_lshrrev_b32 v{T}, 6, v0
s_and_b32 s{S_T0}, s2, 7
s_lshr_b32 s{S_T1}, s2, 3
v_readfirstlane_b32 s{S_W}, v{T}
s_lshr_b32 s{S_T2}, s{S_T0}, 2
s_and_b32 s{S_T3}, s{S_T0}, 3
s_and_b32 s{S_M}, s{S_T1}, 7
s_lshl_b32 s{S_T2}, s{S_T2}, 3
s_add_u32 s{S_M}, s{S_M}, s{S_T2}
s_lshr_b32 s{S_T1}, s{S_T1}, 3
s_lshl_b32 s{S_T3}, s{S_T3}, 2
s_add_u32 s{S_C}, s{S_T1}, s{S_T3}
s_and_b32 s{S_TG}, s{S_W}, 3
s_lshr_b32 s{S_HB}, s{S_W}, 2
s_lshl_b32 s{S_W1K}, s{S_W}, 10
v_lshrrev_b32 v{T}, 3, v{l}
v_and_b32 v{T+1}, 7, v{l}
v_lshrrev_b32 v{T+2}, 4, v{l}
v_xor_b32 v{T+3}, v{T+1}, v{T+2}
v_lshlrev_b32 v{T+3}, 4, v{T+3}
v_lshl_add_u32 v{V_X0}, v{T}, 10, v{T+3}
v_xor_b32 v{V_X1}, 64, v{V_X0}
v_and_b32 v{T+2}, 1, v{T+2}
v_lshlrev_b32 v{T+2}, 2, v{T+2}
v_xor_b32 v{T+3}, v{T+1}, v{T+2}
v_lshlrev_b32 v{T+3}, 4, v{T+3}
v_mul_u32_u24 v{T+4}, 3072, v{T}
v_add_u32 v{V_WQ}, v{T+4}, v{T+3}
v_mul_u32_u24 v{T+4}, 2752, v{T}
v_add_u32 v{V_WF}, v{T+4}, v{T+3}
s_lshl_b32 s{S_XB}, s{S_M}, 17
s_lshl_b32 s{S_T0}, s{S_W}, 14
s_add_u32 s{S_XB}, s{S_XB}, s{S_T0}
s_lshr_b32 s{S_T1}, s{S_C}, 1
s_mul_i32 s{S_T2}, s{S_W}, {8*3072}
s_mul_i32 s{S_T3}, s{S_W}, {8*2752}
s_waitcnt lgkmcnt(0)
""")
    def srd(base, p, size):
        a(f"s_mov_b32 s{base}, s{p}\ns_mov_b32 s{base+1}, s{p+1}\ns_mov_b32 s{base+2}, {size}\ns_mov_b32 s{base+3}, 0x00020000")
    srd(SRD_X, 8, 2048 * 1024); srd(SRD_WQ, 10, 512 * 3072); srd(SRD_PHI, 12, 32 * 512)
    srd(SRD_WG, 18, 512 * 2752); srd(SRD_WU, 20, 512 * 2752); srd(SRD_WS, 28, 0x10000000)
    a(f"""
s_mov_b32 s92, s26
s_mov_b32 s93, s27
s_mov_b32 s94, 256
s_mov_b32 s95, 0x00020000
s_bitcmp1_b32 s{S_C}, 0
s_cbranch_scc1 k1_ffn_setup
s_lshl_b32 s{S_T0}, s{S_T1}, 7
s_add_u32 s{S_TB+2}, s{S_T2}, s{S_T0}
s_add_u32 s{S_TB+0}, s{S_TB+2}, 1024
s_add_u32 s{S_TB+1}, s{S_TB+2}, 2048
s_mov_b32 s{S_U0}, s{S_T1}
s_branch k1_att
k1_ffn_setup:
; c' = s_T1 : units: c'<6: 3c'.. ; c'==6: 18,19 ; c'==7: 20,21
s_mul_i32 s{S_U0}, s{S_T1}, 3
s_cmp_eq_u32 s{S_T1}, 7
s_cselect_b32 s{S_T0}, 1, 0
s_sub_u32 s{S_U0}, s{S_U0}, s{S_T0}
s_add_u32 s{S_U1}, s{S_U0}, 1
s_add_u32 s77, s{S_U0}, 2
s_lshl_b32 s{S_T0}, s{S_U0}, 7
s_add_u32 s{S_TB+0}, s{S_T3}, s{S_T0}
s_mov_b32 s{S_TB+1}, s{S_TB+0}
s_add_u32 s{S_TB+2}, s{S_TB+0}, 128
s_mov_b32 s{S_TB+3}, s{S_TB+2}
s_add_u32 s{S_TB+4}, s{S_TB+0}, 256
s_mov_b32 s73, s{S_TB+4}
s_cmp_ge_u32 s{S_T1}, 6
s_cbranch_scc1 k1_ffn4
s_branch k1_ffn6
""")
    def setup_rest():
        a(f"""
v_lshlrev_b32 v{V_L16}, 4, v{l}
v_and_b32 v{T}, 31, v{l}
v_lshrrev_b32 v{T+1}, 5, v{l}
v_bfe_u32 v{T+2}, v{l}, 1, 3
v_xor_b32 v{T+2}, v{T+2}, v{T+1}
s_lshl_b32 s{S_T0}, s{S_TG}, 12
s_add_u32 s{S_T0}, s{S_T0}, 65536
v_lshlrev_b32 v{T+3}, 7, v{T}
v_add_u32 v{T+3}, s{S_T0}, v{T+3}
""")
        for i in range(4):
            a(f"s_add_u32 s{S_T1}, s{S_TG}, {i}\ns_and_b32 s{S_T1}, s{S_T1}, 3\ns_lshl_b32 s{S_T1}, s{S_T1}, 1\n"
              f"v_xor_b32 v{T+4}, s{S_T1}, v{T+2}\nv_lshl_add_u32 v{V_XA+i}, v{T+4}, 4, v{T+3}")
        a(f"""
v_bfe_u32 v{T+4}, v{l}, 2, 2
v_lshl_add_u32 v{T+5}, v{T+1}, 3, v{T+4}
v_lshlrev_b32 v{T+5}, 7, v{T+5}
v_bfe_u32 v{T+6}, v{l}, 4, 1
v_lshlrev_b32 v{T+6}, 1, v{T+6}
v_bfe_u32 v{T+7}, v{l}, 1, 1
v_add_u32 v{T+6}, v{T+6}, v{T+7}
s_lshl_b32 s{S_T0}, s{S_HB}, 2
v_add_u32 v{T+6}, s{S_T0}, v{T+6}
v_lshrrev_b32 v{T+7}, 1, v{T+4}
v_lshlrev_b32 v{T+7}, 2, v{T+7}
v_xor_b32 v{T+6}, v{T+6}, v{T+7}
v_lshl_add_u32 v{T+5}, v{T+6}, 4, v{T+5}
v_and_b32 v{T+7}, 1, v{l}
v_lshl_add_u32 v{T+5}, v{T+7}, 3, v{T+5}
""")
        for i in range(4):
            a(f"s_add_u32 s{S_T1}, s{S_TG}, {i}\ns_and_b32 s{S_T1}, s{S_T1}, 3\ns_lshl_b32 s{S_T1}, s{S_T1}, 11\nv_add_u32 v{V_WA+i}, s{S_T1}, v{T+5}")
        a(f"""
v_and_b32 v{T+4}, 15, v{l}
v_bfe_u32 v{T+6}, v{l}, 4, 1
v_cmp_eq_u32 vcc, v{T+4}, v{T+6}
v_mov_b32 v{T+7}, 0x3f803f80
v_lshrrev_b32 v{T+6}, 4, v{l}
v_cndmask_b32 v{V_SEL}, 0, v{T+7}, vcc
v_mov_b32 v{V_SEL+1}, v{V_SEL}
v_mov_b32 v{V_SEL+2}, v{V_SEL}
v_mov_b32 v{V_SEL+3}, v{V_SEL}
v_mov_b32 v{T+10}, 0x3f803f80
v_mov_b32 v{T+11}, 0x3f803f80
v_lshlrev_b32 v{T+6}, 6, v{T+6}
v_lshl_add_u32 v{T+6}, v{T+4}, 8, v{T+6}
s_lshl_b32 s{S_T0}, s{S_HB}, 9
s_lshl_b32 s{S_T1}, s{S_TG}, 2
s_add_u32 s{S_T1}, s{S_T0}, s{S_T1}
s_add_u32 s{S_T1}, s{S_T1}, {CSP_OFF}
v_add_u32 v{V_CSADD}, s{S_T1}, v{T+6}
v_lshlrev_b32 v{T+6}, 4, v{T+1}
s_lshl_b32 s{S_T1}, s{S_W}, 7
s_add_u32 s{S_T1}, s{S_T1}, {CSF_OFF}
v_add_u32 v{V_CSRD}, s{S_T1}, v{T+6}
v_lshlrev_b32 v{T+6}, 2, v{T}
v_add_u32 v{V_CSFW}, s{S_T1}, v{T+6}
s_mov_b32 s{S_EXC}, 0x00030003
s_mov_b32 s{S_EXC+1}, 0x00030003
s_mov_b32 s78, 0x0001ffff
s_mov_b32 s80, 0xffff0001
s_lshl_b32 s{S_TB32}, s{S_M}, 2
s_add_u32 s{S_TB32}, s{S_TB32}, s{S_TG}
s_mul_i32 s{S_HST}, s{S_TB32}, {86*1024}
""")

    def touch_w(tiles, t, vreg=None):
        srd_, voff, stride = tiles[t]
        wv = 4 + (t % 4)
        l2 = a.uid("pfw")
        vt = V_T + 9 if vreg is None else vreg
        a(f"""
s_cmp_lg_u32 s{S_W}, {wv}
s_cbranch_scc1 {l2}
s_and_b32 s{S_T0}, s{S_M}, 7
s_mul_i32 s{S_T0}, s{S_T0}, {64 * stride}
s_add_u32 s{S_T0}, s{S_T0}, s{tb(t)}
s_sub_u32 s{S_T0}, s{S_T0}, {8 * wv * stride}
v_mul_u32_u24 v{vt}, {stride}, v{l}
buffer_load_dword v15, v{vt}, {sr(srd_,4)}, s{S_T0} offen
buffer_load_dword v15, v{vt}, {sr(srd_,4)}, s{S_T0} offen offset:124
{l2}:
""")
    def touch_p3w():
        l2 = a.uid("p3w")
        a(f"""
s_lshr_b32 s{S_T0}, s2, 3
s_lshr_b32 s{S_T1}, s{S_T0}, 4
s_lshl_b32 s{S_T1}, s{S_T1}, 3
s_and_b32 s{S_T0}, s{S_T0}, 7
s_add_u32 s{S_T0}, s{S_T0}, s{S_T1}
s_lshl_b32 s{S_T0}, s{S_T0}, 3
s_add_u32 s{S_T0}, s{S_T0}, s{S_W}
s_lshl_b32 s{S_T0}, s{S_T0}, 14
s_mov_b32 s99, 0x00020000
s_cmp_ge_u32 s{S_T0}, {1376*1024}
s_cbranch_scc1 {l2}_o
s_mov_b32 s96, s22
s_mov_b32 s97, s23
s_mov_b32 s98, {1376*1024}
s_branch {l2}_g
{l2}_o:
s_sub_u32 s{S_T0}, s{S_T0}, {1376*1024}
s_mov_b32 s96, s14
s_mov_b32 s97, s15
s_mov_b32 s98, {512*1024}
{l2}_g:
v_lshlrev_b32 v16, 7, v{l}
buffer_load_dword v15, v16, s[96:99], s{S_T0} offen
s_add_u32 s{S_T0}, s{S_T0}, 8192
buffer_load_dword v15, v16, s[96:99], s{S_T0} offen
""")
    def startup(tiles, att):
        a.vm_reset(); STAMP["n"] = 0; stamp_init(a); stamp(a); stamp_rt(a, 14)
        def issue_stage(s):
            dma_x(a, s)
            dma_w_units(a, 0, tiles[0], [s]); a.vm[-1] = f"T0u{s}"
        lab = a.uid("pf")
        a(f"""
s_cmp_ge_u32 s{S_W}, 4
s_cbranch_scc1 {lab}_w
s_lshr_b32 s{S_T0}, s2, 3
s_lshl_b32 s{S_T0}, s{S_T0}, 15
s_lshl_b32 s{S_T1}, s{S_W}, 13
s_add_u32 s{S_T0}, s{S_T0}, s{S_T1}
s_bfe_u32 s{S_T1}, s2, 0x10002
s_lshl_b32 s{S_T1}, s{S_T1}, 20
s_add_u32 s{S_T0}, s{S_T0}, s{S_T1}
v_lshlrev_b32 v{T}, 7, v{l}
buffer_load_dword v{V_E}, v{T}, {sr(SRD_X,4)}, s{S_T0} offen
s_branch {lab}_e
{lab}_w:
""")
        touch_w(tiles, 0)
        a(f"{lab}_e:")
        issue_stage(0)
        PRE_WAIT = True
        if att:
            a(f"""
v_bfe_u32 v{T}, v{l}, 2, 1
v_bfe_u32 v{T+1}, v{l}, 3, 2
v_and_b32 v{T+2}, 3, v{l}
v_lshl_add_u32 v{T+1}, v{T+1}, 2, v{T+2}
v_lshrrev_b32 v{T+2}, 5, v{l}
v_lshlrev_b32 v{T+2}, 2, v{T+2}
v_lshl_add_u32 v{T+2}, v{T}, 4, v{T+2}
v_lshl_add_u32 v{T+1}, v{T+2}, 4, v{T+1}
v_lshlrev_b32 v{T+1}, 1, v{T+1}
s_lshl_b32 s{S_T0}, s{S_U0}, 1
s_add_u32 s{S_T0}, s{S_T0}, s{S_HB}
s_lshl_b32 s{S_T0}, s{S_T0}, 10
""")
            for j in range(8):
                d = j if j < 4 else 8 + j - 4
                a(f"buffer_load_ushort v{V_ACC2 + 4 + j}, v{T+1}, {sr(SRD_PHI,4)}, s{S_T0} offen offset:{d * 32}")
                a.vm_issue("phi")
        setup_rest()
        a("s_waitcnt vmcnt(0)")
        a.vm_reset()
        issue_stage(1); issue_stage(2); issue_stage(3)
        lab = a.uid("su")
        a(f"s_cmp_eq_u32 s{S_HB}, 0")
        a(f"s_cbranch_scc1 {lab}_A")
        vm0 = list(a.vm); st0 = STAMP["n"]
        FS = [V_F, V_E + 16]
        def reads_ops(s):
            xoff = {0: 0, 1: 16384, 2: 32768, 3: 49152, 4: 0, 5: 16384, 6: 0, 7: 16384}[s]
            ops = []
            if s == 4: ops.append(Op([f"v_add_u32 v{V_XA+i}, 0x10000, v{V_XA+i}" for i in range(4)], cost=4))
            if s == 6: ops.append(Op([f"v_add_u32 v{V_XA+i}, 0xffff0000, v{V_XA+i}" for i in range(4)], cost=4))
            for ii in range(4):
                i = 4 * s + ii; F = FS[s & 1] + 4 * ii; off = s * 8192
                ops.append(Op([f"ds_read_b128 {vr(V_X + 4 * i, 4)}, v{V_XA + ii} offset:{xoff}",
                               f"ds_read_b64_tr_b16 {vr(F,2)}, v{V_WA + ii} offset:{off}",
                               f"ds_read_b64_tr_b16 {vr(F+2,2)}, v{V_WA + ii} offset:{off + 512}"], cost=3, lds=[f"su{i}"] * 3))
            return ops
        def dmax_ops(s):
            base = [65536, 81920, 98304, 114688, 131072, 147456, 65536, 81920][s]
            ops = []
            for e in range(2):
                ops.append(Op([f"s_lshl_b32 s{S_T3}, s{S_W1K}, 1", f"s_add_u32 m0, s{S_T3}, {base + e * 1024}", f"s_add_u32 s{S_T2}, s{S_XB}, {e * 8192 + s * 128}",
                               f"buffer_load_dwordx4 v{V_X0 if e == 0 else V_X1}, {sr(SRD_X,4)}, s{S_T2} offen lds"], cost=3, vm=[f"x{s}"]))
            return ops
        def dmaw_ops(Tt, units, tagu=False):
            ops = []
            if DBG.get('noT1') and Tt == 1: return ops
            for q in units:
                o = dma_op(Tt, tiles[Tt], q); o.cost = 3
                if tagu: o.vm = [f"T0u{q}"]
                ops.append(o)
            return ops
        def compute_slots(s, hb):
            slots = []
            for ii in range(4):
                i = 4 * s + ii; F = FS[s & 1] + 4 * ii; X = V_X + 4 * i
                sl = [Op(f"v_mfma_f32_32x32x16_bf16 {vr(V_ACC1,16)}, {vr(F,4)}, {vr(X,4)}, {'0' if i == 0 else vr(V_ACC1,16)}", needs=f"su{i}")]
                if ii == 0: sl.append(Op(f"v_mfma_f32_16x16x32_bf16 {vr(V_CSD,4)}, {vr(F,4)}, {vr(V_SEL,4)}, {'0' if i == 0 else vr(V_CSD,4)}"))
                slots.append(sl)
                sl2 = []
                for hh in range(2):
                    Bop = vr(X + 2 * hh, 2) if hb == 1 else vr(T + 10, 2)
                    D = V_ST if hh == 0 else T + 4
                    sl2.append(Op(f"v_mfma_f32_4x4x4_16b_bf16 {vr(D,4)}, {vr(X + 2 * hh, 2)}, {Bop}, {'0' if i == 0 else vr(D, 4)}"))
                if DBG.get('noST'): sl2 = []
                slots.append(sl2)
            return slots
        for hb in (1, 0):
            if hb == 0:
                a(f"s_branch {lab}_J"); a.label(lab + "_A"); a.vm_reset(vm0); STAMP["n"] = st0
            W.lds_reset()
            for s in range(9):
                eops = []
                if s < 8:
                    if DBG.get('fineS') and s in (2, 3, 4, 5, 6): stamp(a); W.all_done()
                    a.wait_vm([f"x{s}", f"T0u{s}"])
                    if DBG.get('fineS') and s in (3, 4, 5): stamp(a); W.all_done()
                    if s >= 2: W.need([f"su{4 * (s - 2) + 3}"])
                    a("s_barrier")
                    if DBG.get('fineS'):
                        if s in (2, 3, 4, 5, 6): stamp(a); W.all_done()
                    elif s in (0, 4): stamp(a); W.all_done()
                    if s == 0: touch_w(tiles, 1)
                    if s == 3: touch_w(tiles, 2)
                    if s == 6 and len(tiles) > 3: touch_w(tiles, 3)
                    eops += reads_ops(s)
                    if s == 0: eops += dmax_ops(4) + dmaw_ops(0, [4], True) + dmax_ops(5) + dmaw_ops(0, [5], True)
                    if s == 1: eops += dmaw_ops(0, [6, 7], True)
                    if s == 2: eops += dmax_ops(6) + dmaw_ops(1, [0])
                    if s == 3: eops += dmax_ops(7) + dmaw_ops(1, [1])
                    if s == 4: eops += dmaw_ops(1, [2, 4, 5])
                    if s == 5: eops += dmaw_ops(1, [3, 6, 7])
                if s >= 1: W.weave(compute_slots(s - 1, hb), eops, 0, 7, dist=0)
                else:
                    for o in eops: W.emit(o)
        a.label(lab + "_J")
        a("s_nop 7")
        for t in cs_write(0).text: a(t)
        for r in range(4): a(f"v_add_f32 v{V_ST + r}, v{V_ST + r}, v{T + 4 + r}")
        a(f"""
v_and_b32 v{T}, 3, v{l}
v_cmp_eq_u32 vcc, 1, v{T}
v_cmp_eq_u32 s[82:83], 2, v{T}
v_cmp_eq_u32 s[70:71], 3, v{T}
s_nop 1
v_cndmask_b32 v{V_ST}, v{V_ST}, v{V_ST+1}, vcc
v_cndmask_b32 v{V_ST}, v{V_ST}, v{V_ST+2}, s[82:83]
v_cndmask_b32 v{V_ST}, v{V_ST}, v{V_ST+3}, s[70:71]
v_mov_b32 v{V_ST+1}, v{V_ST}
s_nop 1
v_permlane32_swap_b32 v{V_ST}, v{V_ST+1}
v_add_f32 v{V_ST}, v{V_ST}, v{V_ST+1}
v_and_b32 v{T}, 31, v{l}
v_lshlrev_b32 v{V_CSPR}, 4, v{T}
s_lshl_b32 s{S_T0}, s{S_TG}, 5
v_add_u32 v{T}, s{S_T0}, v{T}
v_lshlrev_b32 v{T}, 2, v{T}
v_add_u32 v{T}, {ST_OFF}, v{T}
s_lshl_b32 s{S_T0}, s{S_HB}, 9
v_add_u32 v{T+1}, s{S_T0}, v{T}
ds_write_b32 v{T+1}, v{V_ST}
s_add_u32 s{S_T0}, s{S_T0}, {CSP_OFF}
v_add_u32 v{V_CSPR}, s{S_T0}, v{V_CSPR}
""")
        a.wait_vm("T1", " lgkmcnt(0)")
        a("s_barrier")
        stamp(a)
        W.lds_reset(); W.marks["lastm"] = W.n - 100
        a(f"ds_read_b32 v{T+2}, v{T}\nds_read_b32 v{T+3}, v{T} offset:512")
        W.lq += ["st", "st"]
        for i in range(LA): W.emit(rd_ops(i, 1))
        if len(tiles) > 4: touch_w(tiles, 4, 16); touch_w(tiles, 5, 16)
        W.need(["st"])
        a(f"""
v_mul_f32 v{T+2}, {flit(1/512)}, v{T+2}
v_mul_f32 v{T+3}, {flit(1/512)}, v{T+3}
v_fma_f32 v{T+3}, -v{T+2}, v{T+2}, v{T+3}
v_max_f32 v{T+3}, 0, v{T+3}
v_add_f32 v{T+3}, {flit(1e-5)}, v{T+3}
v_sub_f32 v{V_NMEAN}, 0, v{T+2}
v_rsq_f32 v{V_RSTD}, v{T+3}
v_mov_b32 v{V_IRSTD}, v{T+3}
s_nop 0
v_mul_f32 v{V_K0}, {flit(C0)}, v{V_RSTD}
v_mul_f32 v{V_C1}, v{V_RSTD}, v{V_RSTD}
v_mul_f32 v{V_C1}, v{V_C1}, v{V_RSTD}
v_mul_f32 v{V_C1}, {flit(C1)}, v{V_C1}
""")
        if att:
            a(f"""
v_mul_f32 v{V_CLOG}, {flit(LOG2E)}, v{V_RSTD}
v_mul_f32 v{T+4}, v{V_NMEAN}, v{V_RSTD}
ds_write_b32 v{T}, v{V_RSTD} offset:{RQ_OFF - ST_OFF}
ds_write_b32 v{T}, v{T+4} offset:{RQ_OFF - ST_OFF + 512}
v_bfe_u32 v{T+5}, v{l}, 2, 1
v_cmp_eq_u32 vcc, 0, v{T+5}
""")
            W.lq += ["rqw", "rqw"]
            a.wait_vm("phi")
            for q in range(4): a(f"v_lshl_or_b32 v{V_E+q}, v{V_ACC2+5+2*q}, 16, v{V_ACC2+4+2*q}")
            for q in range(4): a(f"v_cndmask_b32 v{V_A0+q}, 0, v{V_E+q}, vcc")
            for q in range(4): a(f"v_cndmask_b32 v{V_A1+q}, v{V_E+q}, 0, vcc")

    def step(Tn, tiles, NT, swapped, eops, mid=None):
        if DBG.get('noE'): eops = [[] for _ in eops]
        acc = V_ACC1 if Tn % 2 == 0 else V_ACC2
        last = (Tn == NT - 1)
        slots = []
        for i in range(32):
            sl = []
            if Tn % 2 == 1 and i + LA == 16: sl.append(Op([f"v_add_u32 v{V_WA+k}, 0x10000, v{V_WA+k}" for k in range(4)]))
            if i + LA < 32: sl.append(rd_ops(i + LA, Tn))
            sl.append(mfma_op(i, Tn, acc, swapped))
            if i % 4 == 0 and not DBG.get('noCS'): sl.append(cs_op(i))
            if not DBG.get('noDMA') and not last and Tn + 1 >= 2 and i < 16 and i % 2 == 1: sl.append(dma_op(Tn + 1, tiles[Tn + 1], i // 2))
            slots.append(sl)
        if mid is None:
            W.weave(slots[:30], eops[0], 0, 29)
        else:
            k = mid[0]
            W.weave(slots[:k], eops[0])
            mid[1]()
            W.weave(slots[k:30], eops[1], 0, 29 - k) if k < 30 else None
        W.emit(cs_write(Tn))
        if not last:
            for i in range(4): a(f"v_add_u32 v{V_WA+i}, 0xffff8000, v{V_WA+i}")
        n = a.vm_wait_count(f"T{Tn+1}") if not last else None
        W.wait_all_lds(f" vmcnt({min(n,63)})" if n is not None else "")
        a("s_barrier")
        stamp(a)
        if not last:
            W.emit(rd_ops(0, Tn + 1)); W.emit(rd_ops(1, Tn + 1))
        W.emit(slots[30][-1])
        if not last: W.emit(rd_ops(2, Tn + 1))
        W.emit(slots[31][-1])
        W.marks["lastm"] = W.n
        if Tn == NT - 2 and NT in (4, 6) and TOUCH_P3 and not DBG.get('noP3'): touch_p3w()

    def soff_ops(unit):
        return [V([f"s_lshl_b32 s{S_T1}, s{unit}, 12", f"s_lshl_b32 s{S_T2}, s{S_HB}, 11", f"s_add_u32 s{S_T1}, s{S_T1}, s{S_T2}", f"s_add_u32 s{S_T1}, s{S_T1}, s{S_HST}"], cost=2)]
    def run(ops):
        for o in ops: W.emit(o)
    def get_nonce(sreg, vtmp):
        lab = a.uid("nn")
        a(f"""
v_mov_b32 v{vtmp}, 0
{lab}:
buffer_load_dword v{vtmp+1}, v{vtmp}, s[92:95], 0 offen sc1
s_waitcnt vmcnt(0)
v_readfirstlane_b32 s{sreg}, v{vtmp+1}
s_cmp_lg_u32 s{sreg}, 0
s_cbranch_scc1 {lab}_ok
s_sleep 4
s_branch {lab}
{lab}_ok:
""")
    def kvx():
        lab = a.uid("kvx")
        a(f"""
s_cmp_ge_u32 s{S_TG}, 2
s_cbranch_scc1 {lab}
v_lshrrev_b32 v{T+9}, 5, v{l}
v_bfe_u32 v{T+10}, v{l}, 2, 2
v_lshl_add_u32 v{T+10}, v{T+9}, 2, v{T+10}
v_lshlrev_b32 v{T+10}, 6, v{T+10}
v_bfe_u32 v{T+11}, v{l}, 4, 1
v_lshl_add_u32 v{T+10}, v{T+11}, 5, v{T+10}
v_and_b32 v{T+8}, 3, v{l}
v_lshl_add_u32 v{T+10}, v{T+8}, 3, v{T+10}
s_lshl_b32 s{S_T0}, s{S_TG}, 11
s_lshl_b32 s{S_T1}, s{S_HB}, 14
s_add_u32 s{S_T0}, s{S_T0}, s{S_T1}
s_add_u32 s{S_T0}, s{S_T0}, {PHI_OFF}
v_add_u32 v{T+8}, s{S_T0}, v{T+10}
v_cmp_eq_u32 vcc, s{S_TG}, v{T+11}
v_and_b32 v{T+6}, 15, v{l}
v_lshlrev_b32 v{T+5}, 4, v{T+9}
v_lshl_add_u32 v{T+7}, v{T+9}, 4, v{T+6}
v_lshlrev_b32 v{T+7}, 4, v{T+7}              ; (hf*16+d)*16
s_lshl_b32 s{S_T0}, s{S_HB}, 13
s_add_u32 s{S_T0}, s{S_T0}, {VIMG_OFF}
v_cndmask_b32 v{T+10}, 0, -1, vcc
v_add_u32 v{T+9}, s{S_T0}, v{V_L16}
v_mov_b32 v{T+11}, 0x3f803f80
s_cmp_eq_u32 s{S_TG}, 0
s_mov_b32 s70, 0x0000ffff
s_mov_b32 s71, 0x00010000
s_cselect_b32 s82, s70, 0xffff0000
s_cselect_b32 s70, s71, 1
s_mov_b32 s83, s82
s_mov_b32 s71, s70
s_lshl_b32 s{S_T1}, s{S_U0}, 2
s_add_u32 s{S_T1}, s{S_T1}, s{S_TG}
s_lshl_b32 s{S_T2}, s{S_HB}, 1
s_add_u32 s{S_T1}, s{S_T1}, s{S_T2}
s_lshl_b32 s{S_T1}, s{S_T1}, 4
s_add_u32 s{S_T1}, s{S_T1}, s{S_M}
s_lshl_b32 s{S_T2}, s{S_T1}, 7
s_add_u32 s{S_T2}, s{S_T2}, {ZP_OFF}
s_lshl_b32 s{S_T1}, s{S_T1}, 11
s_add_u32 s{S_T1}, s{S_T1}, {KVP_OFF}
s_waitcnt lgkmcnt(0)
""")
        D = V_E + 16
        def rd(k):
            tgp, ks = k >> 1, k & 1
            PF = V_E + 8 * (k & 1); Bp = PF + 4
            a(f"ds_read_b64_tr_b16 {vr(PF, 2)}, v{T+8} offset:{tgp * 4096 + 1024 * ks}")
            a(f"ds_read_b64_tr_b16 {vr(PF + 2, 2)}, v{T+8} offset:{tgp * 4096 + 1024 * ks + 512}")
            a(f"ds_read_b128 {vr(Bp, 4)}, v{T+9} offset:{tgp * 2048 + 1024 * ks}")
        rd(0); rd(1)
        for k in range(8):
            PF = V_E + 8 * (k & 1); Bp = PF + 4
            a(f"s_waitcnt lgkmcnt({3 if k < 7 else 0})")
            for q in range(4): a(f"v_bfi_b32 v{Bp + q}, v{T+10}, v{Bp + q}, v{T+11}")
            a("s_nop 1")
            a(f"v_mfma_f32_32x32x16_bf16 {vr(D,16)}, {vr(PF,4)}, {vr(Bp,4)}, {'0' if k == 0 else vr(D,16)}")
            if k + 2 < 8: rd(k + 2)
        a("s_nop 7\ns_nop 7")
        a(f"s_mov_b64 exec, {sr(82,2)}")
        for g in range(4):
            a(f"buffer_store_dwordx4 {vr(D + 4 * g, 4)}, v{T+7}, {sr(SRD_WS,4)}, s{S_T1} offen offset:{512 * g} sc1")
        a(f"s_mov_b64 exec, {sr(70,2)}")
        for g in range(4):
            a(f"buffer_store_dwordx4 {vr(D + 4 * g, 4)}, v{T+5}, {sr(SRD_WS,4)}, s{S_T2} offen offset:{32 * g} sc1")
        a("s_mov_b64 exec, -1")
        get_nonce(72, T)
        a(f"""
v_mov_b32 v{T+2}, {CNT_OFF}
v_mov_b32 v{T+3}, 1
s_mov_b64 exec, 1
ds_add_rtn_u32 v{T+4}, v{T+2}, v{T+3}
s_waitcnt lgkmcnt(0)
s_mov_b64 exec, -1
v_readfirstlane_b32 s{S_T0}, v{T+4}
s_cmp_lg_u32 s{S_T0}, 3
s_cbranch_scc1 {lab}
s_lshl_b32 s{S_T0}, s{S_U0}, 4
s_add_u32 s{S_T0}, s{S_T0}, s{S_M}
s_lshl_b32 s{S_T0}, s{S_T0}, 7
s_add_u32 s{S_T0}, s{S_T0}, {FLAGKV_OFF}
s_mov_b64 exec, 1
buffer_store_dword v{T+1}, v{T}, {sr(SRD_WS,4)}, s{S_T0} offen sc1
s_mov_b64 exec, -1
""")
        a.label(lab)
        a("s_waitcnt lgkmcnt(0)")
        W.all_done()
    def p2():
        lab = a.uid("p2")
        a(f"s_cmp_lg_u32 s{S_W}, 7"); a(f"s_cbranch_scc1 {lab}_np")
        get_nonce(72, T)
        a(f"""
s_lshl_b32 s{S_T0}, s{S_U0}, 11
s_add_u32 s{S_T0}, s{S_T0}, {FLAGKV_OFF}
v_and_b32 v{T}, 15, v{l}
v_lshlrev_b32 v{T}, 7, v{T}
{lab}_poll:
buffer_load_dword v{T+1}, v{T}, {sr(SRD_WS,4)}, s{S_T0} offen sc1
s_waitcnt vmcnt(0)
v_cmp_ne_u32 vcc, s72, v{T+1}
s_nop 1
s_cbranch_vccz {lab}_np
s_sleep 4
s_branch {lab}_poll
{lab}_np:
s_barrier
""")
        stamp(a)
        X0 = V_X
        a(f"""
s_lshl_b32 s{S_T0}, s{S_U0}, 2
s_lshr_b32 s{S_T1}, s{S_W}, 1
s_add_u32 s{S_T0}, s{S_T0}, s{S_T1}
s_and_b32 s{S_T1}, s{S_W}, 1
s_lshl_b32 s{S_T1}, s{S_T1}, 10
s_lshl_b32 s{S_T2}, s{S_T0}, 11
s_add_u32 s{S_T2}, s{S_T2}, s{S_T1}
s_add_u32 s{S_T2}, s{S_T2}, {ZP_OFF}
s_lshl_b32 s{S_T0}, s{S_T0}, 15
s_add_u32 s{S_T0}, s{S_T0}, s{S_T1}
s_add_u32 s{S_T0}, s{S_T0}, {KVP_OFF}
buffer_load_dwordx4 {vr(X0 + 64, 4)}, v{V_L16}, {sr(SRD_WS,4)}, s{S_T2} offen sc1
""")
        for mm in range(16):
            a(f"buffer_load_dwordx4 {vr(X0 + 4 * mm, 4)}, v{V_L16}, {sr(SRD_WS,4)}, s{S_T0} offen sc1")
            if mm < 15: a(f"s_add_u32 s{S_T0}, s{S_T0}, 2048")
        Z = X0 + 64
        a("s_waitcnt vmcnt(16)")
        for r in range(4): a(f"v_add_f32_dpp v{Z + r}, v{Z + r}, v{Z + r} row_ror:8 row_mask:0xf bank_mask:0xf")
        for r in range(4): a(f"v_mov_b32 v{Z + 4 + r}, v{Z + r}")
        a("s_nop 1")
        for r in range(4): a(f"v_permlane16_swap_b32 v{Z + r}, v{Z + 4 + r}")
        for r in range(4): a(f"v_add_f32 v{Z + r}, v{Z + r}, v{Z + 4 + r}")
        for r in range(4): a(f"v_mov_b32 v{Z + 4 + r}, v{Z + r}")
        a("s_nop 1")
        for r in range(4): a(f"v_permlane32_swap_b32 v{Z + r}, v{Z + 4 + r}")
        for r in range(4): a(f"v_add_f32 v{Z + r}, v{Z + r}, v{Z + 4 + r}")
        a(f"s_lshl_b32 s{S_T1}, s{S_W}, 7\ns_add_u32 s{S_T1}, s{S_T1}, {ZS_OFF}\nv_add_u32 v{T}, s{S_T1}, v{V_L16}\ns_mov_b64 exec, 0xff\nds_write_b128 v{T}, {vr(Z, 4)}\ns_mov_b64 exec, -1")
        for mm in range(1, 16):
            a(f"s_waitcnt vmcnt({15 - mm})")
            for r in range(4): a(f"v_add_f32 v{X0 + r}, v{X0 + r}, v{X0 + 4 * mm + r}")
        a(f"s_lshl_b32 s{S_T1}, s{S_W}, 10\ns_add_u32 s{S_T1}, s{S_T1}, {KS_OFF}\nv_add_u32 v{T}, s{S_T1}, v{V_L16}\nds_write_b128 v{T}, {vr(X0, 4)}")
        a("s_waitcnt lgkmcnt(0)")
        a("s_barrier")
        a(f"""
v_lshrrev_b32 v{T}, 5, v{l}
v_bfe_u32 v{T+1}, v{l}, 4, 1
v_cmp_eq_u32 vcc, v{T}, v{T+1}
v_and_b32 v{T+2}, 15, v{l}
s_lshl_b32 s{S_T0}, s{S_HB}, 1
v_add_u32 v{T}, s{S_T0}, v{T}                ; hl
v_lshlrev_b32 v{T+3}, 11, v{T}
v_lshl_add_u32 v{T+3}, v{T+2}, 4, v{T+3}
v_add_u32 v{T+3}, {KS_OFF}, v{T+3}
v_lshlrev_b32 v{T+4}, 8, v{T}
v_add_u32 v{T+4}, {ZS_OFF}, v{T+4}
v_cndmask_b32 v{T+5}, 0, -1, vcc
""")
        AKV, AZ = X0 + 72, X0 + 88
        for m4 in range(4):
            R = X0 + 24 * (m4 & 1)
            a(f"ds_read_b128 {vr(R,4)}, v{T+3} offset:{m4 * 512}")
            a(f"ds_read_b128 {vr(R+4,4)}, v{T+3} offset:{m4 * 512 + 256}")
            a(f"ds_read_b128 {vr(R+8,4)}, v{T+4} offset:{m4 * 32}")
            a(f"ds_read_b128 {vr(R+12,4)}, v{T+4} offset:{m4 * 32 + 16}")
            a(f"ds_read_b128 {vr(R+16,4)}, v{T+4} offset:{128 + m4 * 32}")
            a(f"ds_read_b128 {vr(R+20,4)}, v{T+4} offset:{128 + m4 * 32 + 16}")
            a("s_waitcnt lgkmcnt(0)")
            for i in range(8): a(f"v_add_f32 v{R + 8 + i}, v{R + 8 + i}, v{R + 16 + i}")
            for q in range(4):
                a(f"v_cvt_pk_bf16_f32 v{AKV + 4 * m4 + q}, v{R + 2 * q}, v{R + 1 + 2 * q}")
                a(f"v_cvt_pk_bf16_f32 v{AZ + 4 * m4 + q}, v{R + 8 + 2 * q}, v{R + 9 + 2 * q}")
            for q in range(4):
                a(f"v_and_b32 v{AKV + 4 * m4 + q}, v{AKV + 4 * m4 + q}, v{T+5}")
                a(f"v_and_b32 v{AZ + 4 * m4 + q}, v{AZ + 4 * m4 + q}, v{T+5}")
        a("s_nop 1")
        for m4 in range(4): a(f"v_mfma_f32_32x32x16_bf16 {vr(V_ACC1,16)}, {vr(AKV + 4 * m4, 4)}, {vr(V_E + 4 * m4, 4)}, {'0' if m4 == 0 else vr(V_ACC1,16)}")
        for m4 in range(4): a(f"v_mfma_f32_32x32x16_bf16 {vr(V_ACC2,16)}, {vr(AZ + 4 * m4, 4)}, {vr(V_E + 4 * m4, 4)}, {'0' if m4 == 0 else vr(V_ACC2,16)}")
        a("s_nop 7\ns_nop 7")
        a(f"v_add_f32 v{V_ACC2}, {flit(1e-6)}, v{V_ACC2}\nv_add_f32 v{V_ACC2+8}, {flit(1e-6)}, v{V_ACC2+8}\nv_rcp_f32 v{V_ACC2}, v{V_ACC2}\nv_rcp_f32 v{V_ACC2+8}, v{V_ACC2+8}\ns_nop 0")
        for i in range(16): a(f"v_mul_f32 v{V_ACC1 + i}, v{V_ACC1 + i}, v{V_ACC2 if i < 8 else V_ACC2 + 8}")
        for q in range(8): a(f"v_cvt_pk_bf16_f32 v{X0 + q}, v{V_ACC1 + 2 * q}, v{V_ACC1 + 2 * q + 1}")
        a(f"""
s_lshl_b32 s{S_T1}, s{S_TB32}, 5
s_lshl_b32 s{S_T2}, s{S_U0}, 2
s_add_u32 s{S_T1}, s{S_T1}, s{S_T2}
s_lshl_b32 s{S_T2}, s{S_HB}, 1
s_add_u32 s{S_T1}, s{S_T1}, s{S_T2}
s_lshl_b32 s{S_T1}, s{S_T1}, 10
s_add_u32 s{S_T1}, s{S_T1}, {O_OFF}
buffer_store_dwordx4 {vr(X0, 4)}, v{V_L16}, {sr(SRD_WS,4)}, s{S_T1} offen
buffer_store_dwordx4 {vr(X0 + 4, 4)}, v{V_L16}, {sr(SRD_WS,4)}, s{S_T1} offen offset:1024
""")
    def qstore():
        a(f"""
s_lshl_b32 s{S_T1}, s{S_TB32}, 4
s_lshl_b32 s{S_T2}, s{S_U0}, 1
s_add_u32 s{S_T1}, s{S_T1}, s{S_T2}
s_add_u32 s{S_T1}, s{S_T1}, s{S_HB}
s_lshl_b32 s{S_T1}, s{S_T1}, 12
s_add_u32 s{S_T1}, s{S_T1}, {PHIQ_OFF}
""")
        for q in range(4):
            a(f"buffer_store_dwordx4 {vr(V_E + 4 * q, 4)}, v{V_L16}, {sr(SRD_WS,4)}, s{S_T1} offen offset:{1024 * q}")

    a.label("k1_att")
    a(f"""
s_cmp_lg_u32 s2, 0
s_cbranch_scc1 k1_nn
s_cmp_lg_u32 s{S_W}, 0
s_cbranch_scc1 k1_nn
s_memrealtime s[84:85]
s_waitcnt lgkmcnt(0)
s_or_b32 s84, s84, 1
v_mov_b32 v{T}, 0
v_mov_b32 v{T+1}, s84
s_mov_b64 exec, 1
buffer_store_dword v{T+1}, v{T}, s[92:95], 0 offen sc1
s_mov_b64 exec, -1
k1_nn:
""")
    tiles = [TQ, TQ, TQ]; NT = 3
    startup(tiles, True)
    a(f"v_mov_b32 v{T+8}, {CNT_OFF}\nv_mov_b32 v{T+9}, 0\nds_write_b32 v{T+8}, v{T+9}"); W.lq.append("cnt")
    step(1, tiles, NT, True, [ops_SM1(0)])
    step(2, tiles, NT, False, [ops_SM2() + ops_EV() + ops_KVW()])
    kvx()
    run(ops_SM1(2)); run(ops_SM2())
    stamp(a)
    p2()
    stamp(a); stamp_dump(a)
    a("s_endpgm")
    for NT, nm in ((6, "k1_ffn6"), (4, "k1_ffn4")):
        a.label(nm)
        tiles = [TG, TU] * (NT // 2)
        units = [S_U0, S_U1, 77]
        startup(tiles, False)
        for Tn in range(1, NT):
            if Tn % 2 == 1: step(Tn, tiles, NT, False, [ops_EG(Tn - 1, V_E)])
            else: step(Tn, tiles, NT, False, [ops_EU(Tn - 1, V_E, soff_ops(units[Tn // 2 - 1]))])
        u = units[NT // 2 - 1]
        lab = a.uid("sk")
        a(f"s_lshl_b32 s{S_T1}, s{u}, 1\ns_add_u32 s{S_T1}, s{S_T1}, s{S_HB}\ns_cmp_ge_u32 s{S_T1}, 43\ns_cbranch_scc1 {lab}")
        run(ops_EU(NT - 1, V_E, soff_ops(u)))
        a.label(lab)
        stamp(a); stamp_dump(a)
        a("s_endpgm")
    a.label("k1_exit")
    a("s_endpgm")
```

```python
from asmlib import *
from sched import Op, Weaver
from p1 import H_OFF, O_OFF, PHIQ_OFF, KVP_OFF, flit, LOG2E
import p1
FLAG_OFF = 0x1800000
RING = 10
WO_LDS = 4 * RING * 2048
KL = WO_LDS + 65536
CNT = KL + 8704

def gen_k3b(a, name="k3b_kernel"):
    W = Weaver(a)
    a.lines.append(kernel_header(name))
    S_W, S_MT, S_NT = 3, 6, 7
    SRD_WS, SRD_W, SRD_X, SRD_O, SRD_D, SRD_WO = 32, 36, 40, 44, 60, 68
    S_AB, S_WB, S_NK, S_LB = 48, 49, 50, 51
    T0, T1, T2 = 56, 57, 58
    V_L, V_L16, V_WOFF, V_WA, V_WB = 1, 2, 3, 4, 5
    V_T = 6
    V_F = 16
    V_ACC = 48
    V_H = 112
    RH, D = 12, 9
    ST = p1.STAMP
    def stamp():
        if not ST["on"]: return
        k = ST["n"]; ST["n"] += 1
        a("s_memtime s[84:85]"); a("s_waitcnt lgkmcnt(0)"); a(f"s_mov_b32 s{86 + k}, s84")
    def tr_addr(base_sgpr_expr):
        a(f"""
v_lshrrev_b32 v{V_T}, 5, v{V_L}
v_bfe_u32 v{V_T+1}, v{V_L}, 2, 2
v_lshl_add_u32 v{V_T+2}, v{V_T}, 2, v{V_T+1}
v_lshlrev_b32 v{V_T+2}, 7, v{V_T+2}
v_bfe_u32 v{V_T+3}, v{V_L}, 4, 1
v_lshlrev_b32 v{V_T+3}, 1, v{V_T+3}
v_bfe_u32 v{V_T+4}, v{V_L}, 1, 1
v_add_u32 v{V_T+3}, v{V_T+3}, v{V_T+4}
v_lshrrev_b32 v{V_T+4}, 1, v{V_T+1}
v_lshlrev_b32 v{V_T+4}, 2, v{V_T+4}
v_xor_b32 v{V_T+3}, v{V_T+3}, v{V_T+4}
v_lshl_add_u32 v{V_T+2}, v{V_T+3}, 4, v{V_T+2}
v_and_b32 v{V_T+4}, 1, v{V_L}
v_lshl_add_u32 v{V_T+2}, v{V_T+4}, 3, v{V_T+2}
v_add_u32 v{V_WA}, {base_sgpr_expr}, v{V_T+2}
""")
    a(f"""
s_cmp_ge_u32 s2, 256
s_cbranch_scc1 k3b_exit
s_load_dwordx16 s[8:23], s[0:1], 0
s_load_dwordx4 s[24:27], s[0:1], 64
s_load_dwordx2 s[28:29], s[0:1], 80
v_and_b32 v{V_L}, 63, v0
v_lshrrev_b32 v{V_T}, 6, v0
s_and_b32 s{T0}, s2, 7
s_lshr_b32 s{T1}, s2, 3
v_readfirstlane_b32 s{S_W}, v{V_T}
s_and_b32 s{S_MT}, s{T1}, 3
s_lshl_b32 s{T0}, s{T0}, 2
s_add_u32 s{S_MT}, s{S_MT}, s{T0}
s_lshr_b32 s{S_NT}, s{T1}, 2
v_lshlrev_b32 v{V_L16}, 4, v{V_L}
v_lshrrev_b32 v{V_T}, 3, v{V_L}
v_and_b32 v{V_T+1}, 7, v{V_L}
v_bfe_u32 v{V_T+2}, v{V_L}, 4, 1
v_lshlrev_b32 v{V_T+2}, 2, v{V_T+2}
v_xor_b32 v{V_T+1}, v{V_T+1}, v{V_T+2}
v_lshlrev_b32 v{V_T+1}, 4, v{V_T+1}
v_lshl_add_u32 v{V_WOFF}, v{V_T}, 10, v{V_T+1}
s_waitcnt lgkmcnt(0)
s_mov_b32 s{SRD_WS}, s28
s_mov_b32 s{SRD_WS+1}, s29
s_mov_b32 s{SRD_WS+2}, 0x10000000
s_mov_b32 s{SRD_WS+3}, 0x00020000
v_mov_b32 v{V_T}, {CNT}
v_mov_b32 v{V_T+1}, 0
ds_write_b32 v{V_T}, v{V_T+1}
s_waitcnt lgkmcnt(0)
s_barrier
s_cmp_ge_u32 s{S_W}, 4
s_cbranch_scc1 k3b_p2
""")
    ST["n"] = 0; stamp()
    a(f"""
s_mul_i32 s{S_LB}, s{S_W}, {RING * 2048}
s_mov_b32 s{SRD_W}, s22
s_mov_b32 s{SRD_W+1}, s23
s_mov_b32 s{SRD_W+2}, {1376*1024}
s_mov_b32 s{SRD_W+3}, 0x00020000
s_mul_i32 s{T0}, s{S_W}, 22
s_cmp_eq_u32 s{S_W}, 3
s_cselect_b32 s{T1}, 1, 0
s_sub_u32 s{T0}, s{T0}, s{T1}             ; ks0
s_cmp_ge_u32 s{S_W}, 2
s_cselect_b32 s{S_NK}, 21, 22
s_lshl_b32 s{T2}, s{S_MT}, 1
s_mul_i32 s{S_AB}, s{T2}, {86*1024}
s_lshl_b32 s{T1}, s{T0}, 10
s_add_u32 s{S_AB}, s{S_AB}, s{T1}
s_add_u32 s54, s{S_AB}, {86*1024}
s_lshl_b32 s{S_WB}, s{T0}, 14
s_lshl_b32 s{T0}, s{S_NT}, 7
s_add_u32 s{S_WB}, s{S_WB}, s{T0}
""")
    a.vm_reset()
    NKM = 22
    def guard(ks, fn, tag_issue=True):
        lab = None
        if ks >= 21:
            lab = a.uid("g"); a(f"s_cmp_le_u32 s{S_NK}, {ks}"); a(f"s_cbranch_scc1 {lab}")
        fn(lab is None)
        if lab: a.label(lab)
    def issue_w(ks):
        def f(count):
            for e in range(2):
                a(f"s_add_u32 m0, s{S_LB}, {(ks % RING) * 2048 + e * 1024}")
                a(f"s_add_u32 s{T0}, s{S_WB}, {ks * 16384 + e * 8192}")
                a(f"buffer_load_dwordx4 v{V_WOFF}, {sr(SRD_W,4)}, s{T0} offen lds")
                if count: a.vm_issue(f"w{ks}")
        guard(ks, f)
    def issue_h(ks):
        def f(count):
            for e in range(2):
                a(f"s_add_u32 s{T0}, s{S_AB if e == 0 else 54}, {ks * 1024}")
                a(f"buffer_load_dwordx4 {vr(V_H + 8 * (ks % RH) + 4 * e, 4)}, v{V_L16}, {sr(SRD_WS,4)}, s{T0} offen")
                if count: a.vm_issue(f"h{ks}")
        guard(ks, f)
    tr_addr(f"s{S_LB}")
    a(f"v_xor_b32 v{V_WB}, 64, v{V_WA}")
    for ks in range(D): issue_w(ks); issue_h(ks)
    def rd(ks):
        F = V_F + 8 * (ks & 1); base = (ks % RING) * 2048
        return Op([f"ds_read_b64_tr_b16 {vr(F,2)}, v{V_WA} offset:{base}", f"ds_read_b64_tr_b16 {vr(F+2,2)}, v{V_WA} offset:{base + 1024}",
                   f"ds_read_b64_tr_b16 {vr(F+4,2)}, v{V_WB} offset:{base}", f"ds_read_b64_tr_b16 {vr(F+6,2)}, v{V_WB} offset:{base + 1024}"],
                  lds=[f"k{ks}a", f"k{ks}a", f"k{ks}b", f"k{ks}b"])
    W.lds_reset()
    a.wait_vm("w0"); W.emit(rd(0))
    BAR1_AT = 8
    for ks in range(NKM):
        if ks in (1, 6, 12, 18): stamp()
        if ks >= 21: a(f"s_cmp_le_u32 s{S_NK}, {ks}"); a("s_cbranch_scc1 k3b_done")
        if ks + 1 < NKM:
            if ks + 1 >= 21: a("s_waitcnt vmcnt(0)")
            else: a.wait_vm([f"w{ks+1}", f"h{ks}"])
            W.emit(rd(ks + 1))
        else: a("s_waitcnt vmcnt(0)")
        F = V_F + 8 * (ks & 1); Hf = V_H + 8 * (ks % RH)
        for tb in range(2):
            for cb in range(2):
                acc = V_ACC + 32 * tb + 16 * cb
                W.emit(Op(f"v_mfma_f32_32x32x16_bf16 {vr(acc,16)}, {vr(F + 4 * cb,4)}, {vr(Hf + 4 * tb,4)}, {'0' if ks == 0 else vr(acc,16)}", needs=f"k{ks}{'ab'[cb]}"))
        if ks + D < NKM: issue_w(ks + D); issue_h(ks + D)
    a.label("k3b_done")
    stamp()
    a("s_waitcnt lgkmcnt(0)")
    a("s_barrier")
    a("s_nop 7"); a("s_nop 7")
    a(f"s_lshl_b32 s{T0}, s{S_W}, 14\nv_add_u32 v{V_T}, s{T0}, v{V_L16}")
    for p in range(16):
        a(f"ds_write_b128 v{V_T}, {vr(V_ACC + 4 * p, 4)} offset:{p * 1024}")
    a("s_waitcnt lgkmcnt(0)")
    a("s_barrier")
    stamp()
    a("s_branch k3b_end")
    a.label("k3b_p2")
    a(f"""
s_setprio 3
s_sub_u32 s4, s{S_W}, 4
s_mov_b32 s{SRD_WO}, s14
s_mov_b32 s{SRD_WO+1}, s15
s_mov_b32 s{SRD_WO+2}, {512*1024}
s_mov_b32 s{SRD_WO+3}, 0x00020000
s_lshl_b32 s{T1}, s4, 17
s_lshl_b32 s{T0}, s{S_NT}, 7
s_add_u32 s{T1}, s{T1}, s{T0}
s_lshl_b32 s{T2}, s4, 14
s_add_u32 s{T2}, s{T2}, {WO_LDS}
s_lshl_b32 s46, s{S_MT}, 1
s_lshr_b32 s47, s4, 1
s_add_u32 s46, s46, s47
s_lshl_b32 s46, s46, 15
s_add_u32 s46, s46, {O_OFF}
""")
    ST_n0 = ST["n"]; ST["n"] = 0; stamp()
    OF = 64
    a(f"s_and_b32 s47, s4, 1\ns_lshl_b32 s47, s47, 14\ns_add_u32 s46, s46, s47")
    for k4 in range(4):
        for k_ in range(4 * k4, 4 * k4 + 4):
            a(f"s_add_u32 m0, s{T2}, {k_ * 1024}\ns_add_u32 s{T0}, s{T1}, {k_ * 8192}\nbuffer_load_dwordx4 v{V_WOFF}, {sr(SRD_WO,4)}, s{T0} offen lds")
        for ks in range(4 * k4, 4 * k4 + 4):
            a(f"buffer_load_dwordx4 {vr(OF + 4 * ks, 4)}, v{V_L16}, {sr(SRD_WS,4)}, s46 offen offset:{(ks % 4) * 1024}")
        a("s_add_u32 s46, s46, 4096")
    a(f"s_and_b32 s{T0}, s4, 1\ns_lshl_b32 s{T0}, s{T0}, 15\ns_add_u32 s{T0}, s{T0}, {WO_LDS}")
    tr_addr(f"s{T0}")
    a(f"""
v_xor_b32 v8, 64, v{V_WA}
v_and_b32 v{V_T+4}, 31, v{V_L}
v_lshlrev_b32 v{V_T+4}, 10, v{V_T+4}
v_lshrrev_b32 v{V_T+5}, 5, v{V_L}
v_lshl_add_u32 v{V_WB}, v{V_T+5}, 3, v{V_T+4}
s_mov_b32 s{SRD_X}, s8
s_mov_b32 s{SRD_X+1}, s9
s_mov_b32 s{SRD_X+2}, 0x200000
s_mov_b32 s{SRD_X+3}, 0x00020000
s_mov_b32 s{SRD_O}, s24
s_mov_b32 s{SRD_O+1}, s25
s_mov_b32 s{SRD_O+2}, 0x200000
s_mov_b32 s{SRD_O+3}, 0x00020000
s_lshl_b32 s{T0}, s{S_MT}, 16
s_lshr_b32 s{T1}, s4, 1
s_lshl_b32 s{T1}, s{T1}, 15
s_add_u32 s{T0}, s{T0}, s{T1}
s_lshl_b32 s{T1}, s{S_NT}, 7
s_add_u32 s{T0}, s{T0}, s{T1}
s_and_b32 s{T1}, s4, 1
s_lshl_b32 s{T1}, s{T1}, 6
s_add_u32 s52, s{T0}, s{T1}
""")
    XIN = 192
    for g in range(4): a(f"buffer_load_dwordx2 {vr(XIN + 2 * g, 2)}, v{V_WB}, {sr(SRD_X,4)}, s52 offen offset:{16 * g}")
    a(f"""
s_waitcnt vmcnt(0)
v_mov_b32 v{V_T}, {CNT}
v_mov_b32 v{V_T+1}, 1
s_mov_b64 exec, 1
ds_add_u32 v{V_T}, v{V_T+1}
s_mov_b64 exec, -1
k3b_spin:
ds_read_b32 v{V_T+1}, v{V_T}
s_waitcnt lgkmcnt(0)
v_readfirstlane_b32 s{T0}, v{V_T+1}
s_cmp_ge_u32 s{T0}, 4
s_cbranch_scc1 k3b_spun
s_sleep 1
s_branch k3b_spin
k3b_spun:
""")
    stamp()
    W.lds_reset()
    A0, A1 = 48, 200
    def rds(ks):
        F = V_F + 8 * (ks % 2)
        return Op([f"ds_read_b64_tr_b16 {vr(F,2)}, v{V_WA} offset:{ks * 2048}", f"ds_read_b64_tr_b16 {vr(F+2,2)}, v{V_WA} offset:{ks * 2048 + 1024}",
                   f"ds_read_b64_tr_b16 {vr(F+4,2)}, v8 offset:{ks * 2048}", f"ds_read_b64_tr_b16 {vr(F+6,2)}, v8 offset:{ks * 2048 + 1024}"],
                  lds=[f"s{ks}a", f"s{ks}a", f"s{ks}b", f"s{ks}b"])
    W.emit(rds(0))
    for ks in range(16):
        if ks + 1 < 16: W.emit(rds(ks + 1))
        F = V_F + 8 * (ks % 2)
        W.emit(Op(f"v_mfma_f32_32x32x16_bf16 {vr(A0,16)}, {vr(F, 4)}, {vr(OF + 4 * ks, 4)}, {'0' if ks == 0 else vr(A0,16)}", needs=f"s{ks}a"))
        W.emit(Op(f"v_mfma_f32_32x32x16_bf16 {vr(A1,16)}, {vr(F + 4, 4)}, {vr(OF + 4 * ks, 4)}, {'0' if ks == 0 else vr(A1,16)}", needs=f"s{ks}b"))
    stamp()
    a("s_barrier")
    a("s_nop 7"); a("s_nop 7")
    a(f"""
s_lshl_b32 s{T0}, s4, 12
s_add_u32 s{T0}, s{T0}, 65536
v_add_u32 v{V_T}, s{T0}, v{V_L16}
s_bitcmp1_b32 s4, 0
s_cbranch_scc1 k3b_x1
""")
    for e in range(4): a(f"ds_write_b128 v{V_T}, {vr(A1 + 4 * e, 4)} offset:{e * 1024}")
    a("s_branch k3b_x2")
    a.label("k3b_x1")
    for e in range(4): a(f"ds_write_b128 v{V_T}, {vr(A0 + 4 * e, 4)} offset:{e * 1024}")
    for i in range(16): a(f"v_mov_b32 v{A0 + i}, v{A1 + i}")
    a.label("k3b_x2")
    a("s_waitcnt lgkmcnt(0)")
    a("s_barrier")
    a(f"s_lshl_b32 s{T0}, s4, 12\nv_add_u32 v{V_T}, s{T0}, v{V_L16}\ns_xor_b32 s{T0}, s4, 1\ns_lshl_b32 s{T0}, s{T0}, 12\ns_add_u32 s{T0}, s{T0}, 65536\nv_add_u32 v{V_T+1}, s{T0}, v{V_L16}")
    R = 64
    for src in range(4):
        for e in range(4):
            a(f"ds_read_b128 {vr(R + 16 * src + 4 * e, 4)}, v{V_T} offset:{src * 16384 + e * 1024}")
    for e in range(4): a(f"ds_read_b128 {vr(128 + 4 * e, 4)}, v{V_T+1} offset:{e * 1024}")
    a("s_waitcnt lgkmcnt(12)")
    for i in range(16): a(f"v_add_f32 v{R + i}, v{R + i}, v{R + 16 + i}")
    a("s_waitcnt lgkmcnt(4)")
    for i in range(16): a(f"v_add_f32 v{R + 32 + i}, v{R + 32 + i}, v{R + 48 + i}")
    for i in range(16): a(f"v_add_f32 v{R + i}, v{R + i}, v{R + 32 + i}")
    for i in range(16): a(f"v_mul_f32 v{R + 16 + i}, {flit(-LOG2E)}, v{R + i}")
    for i in range(16): a(f"v_exp_f32 v{R + 16 + i}, v{R + 16 + i}")
    a("s_waitcnt lgkmcnt(0)")
    for i in range(16): a(f"v_add_f32 v{48 + i}, v{48 + i}, v{128 + i}")
    for i in range(16): a(f"v_mul_f32 v{R + i}, v{R + i}, v{48 + i}")
    for i in range(16): a(f"v_add_f32 v{R + 16 + i}, 1.0, v{R + 16 + i}")
    for i in range(16): a(f"v_rcp_f32 v{R + 16 + i}, v{R + 16 + i}")
    for i in range(16):
        src = XIN + (i >> 1)
        if i & 1: a(f"v_and_b32 v{R + 32 + i}, 0xffff0000, v{src}")
        else: a(f"v_lshlrev_b32 v{R + 32 + i}, 16, v{src}")
    for i in range(16): a(f"v_fma_f32 v{R + i}, v{R + i}, v{R + 16 + i}, v{R + 32 + i}")
    for q in range(8): a(f"v_cvt_pk_bf16_f32 v{R + 16 + q}, v{R + 2 * q}, v{R + 2 * q + 1}")
    for g in range(4): a(f"buffer_store_dwordx2 {vr(R + 16 + 2 * g, 2)}, v{V_WB}, {sr(SRD_O,4)}, s52 offen offset:{16 * g}")
    stamp()
    a.label("k3b_end")
    if ST["on"]:
        a(f"s_lshl_b32 s84, s2, 3\ns_add_u32 s84, s84, s{S_W}\ns_lshl_b32 s84, s84, 6\ns_add_u32 s84, s84, 0x2000000\nv_mov_b32 v{V_T+1}, 0")
        for k in range(16):
            a(f"v_mov_b32 v{V_T}, s{86 + k}")
            a(f"buffer_store_dword v{V_T}, v{V_T+1}, {sr(SRD_WS,4)}, s84 offen offset:{4 * k}")
    a.label("k3b_exit")
    a("s_endpgm")
```

```python
from asmlib import *
from sched import Op, Weaver
import struct

def f2u(x): return struct.unpack("<I", struct.pack("<f", x))[0]
def flit(x): return "0x%08x" % f2u(x)

H_OFF, O_OFF, PHIQ_OFF, KVP_OFF = 0x0, 0x800000, 0xC00000, 0x1400000
ZP_OFF = 0x1600000; FLAGKV_OFF = 0x1700000
BUF0, BUF1, MISC = 0, 65536, 131072
CSP_OFF = MISC; CSF_OFF = MISC + 5120; ST_OFF = MISC + 6144; RQ_OFF = MISC + 7168; VIMG_OFF = MISC + 8192; CNT_OFF = MISC + 4096; KS_OFF = MISC + 8192; ZS_OFF = MISC + 24576
PHI_OFF = 0
LOG2E = 1.4426950408889634
C0 = -2.0 * 0.7978845608028654 * LOG2E
C1 = C0 * 0.044715

S_W, S_TG, S_HB, S_M, S_C = 3, 4, 5, 6, 7
S_RET = 30
SRD_X, SRD_WQ, SRD_WG, SRD_WU, SRD_WS, SRD_PHI = 32, 36, 40, 44, 48, 52
S_T0, S_T1, S_T2, S_T3 = 56, 57, 58, 59
S_TB = 60; S_XB = 65; S_W1K = 66; S_HST = 67; S_U0, S_U1 = 68, 69
S_EXC = 74; S_TB32 = 76
V_LANE = 1
V_X0, V_X1, V_WQ, V_WF = 2, 3, 4, 5
V_XA = 6; V_WA = 10
V_CSFW = 14
V_NMEAN, V_RSTD, V_IRSTD = 18, 19, 20
V_CSRD, V_CSADD, V_L16 = 21, 22, 23
V_SEL = 24; V_CSD = 28; V_ST = 32
V_T = 36; V_E = 48; V_F = 80; V_ACC2 = 96; V_ACC1 = 112; V_X = 128
V_A0 = 6; V_A1 = 32; V_C1 = 2; V_CSPR = 3; V_CLOG = 0; V_K0 = 17
LA = 3
FUSED = {'on': False}
FLAGH_OFF, FLAGO_OFF = 0x1780000, 0x17C0000
CODE = {'total': 4096}
DBG = {}
TOUCH_P3 = True
PREFETCH_X = True

STAMP = {"on": False, "n": 0}
def stamp_init(a):
    if not STAMP["on"]: return
    a(f"s_lshl_b32 s89, s2, 3\ns_add_u32 s89, s89, s{S_W}\ns_lshl_b32 s89, s89, 6\ns_add_u32 s89, s89, 0x2000000")
def _st(a, k, instr):
    a(f"{instr} s[84:85]"); a("s_waitcnt lgkmcnt(0)")
    a(f"v_mov_b32 v15, s84\nv_mov_b32 v16, 0\nbuffer_store_dword v15, v16, {sr(SRD_WS,4)}, s89 offen offset:{4 * k}")
    a.vm_issue("stamp")
def stamp(a):
    if not STAMP["on"]: return
    k = STAMP["n"]; STAMP["n"] += 1
    if k >= 14: return
    _st(a, k, "s_memtime")
def stamp_rt(a, k):
    if not STAMP["on"]: return
    _st(a, k, "s_memrealtime")
def stamp_dump(a):
    if not STAMP["on"]: return
    stamp_rt(a, 15)

def rd_ops(i, tile):
    off = (i >> 2) * 8192; F = V_F + 4 * (i % 4); wa = V_WA + (i & 3)
    return Op([f"ds_read_b64_tr_b16 {vr(F,2)}, v{wa} offset:{off}", f"ds_read_b64_tr_b16 {vr(F+2,2)}, v{wa} offset:{off+512}"],
              cost=2, lds=[f"w{tile}_{i}", f"w{tile}_{i}"])
def mfma_op(i, tile, acc, swapped):
    F = V_F + 4 * (i % 4); X = V_X + 4 * i
    A, B = (X, F) if swapped else (F, X)
    c = "0" if i == 0 else vr(acc, 16)
    return Op(f"v_mfma_f32_32x32x16_bf16 {vr(acc,16)}, {vr(A,4)}, {vr(B,4)}, {c}", needs=f"w{tile}_{i}")
def cs_op(i):
    F = V_F + 4 * (i % 4)
    c = "0" if i == 0 else vr(V_CSD, 4)
    return Op(f"v_mfma_f32_16x16x32_bf16 {vr(V_CSD,4)}, {vr(F,4)}, {vr(V_SEL,4)}, {c}", mark="cs")
def cs_write(tile):
    return Op([f"s_mov_b64 exec, {sr(S_EXC,2)}"] + [f"ds_write_b32 v{V_CSADD}, v{V_CSD + r} offset:{(tile % 4) * 1024 + 16 * r}" for r in range(4)] + ["s_mov_b64 exec, -1"],
              lds=["csw"] * 4, gap=("cs", 9))

def V(s, **k): return Op(s, **k)
def TR(s, **k): return Op(s, cost=2, **k)

def ops_setcs(tile):
    return []
def ops_setcs_real(tile):
    T = V_T
    return [
        Op(f"ds_read_b128 {vr(T+4,4)}, v{V_CSPR} offset:{(tile % 4) * 1024}", lds=["csp"]),
        V(f"v_add_f32 v{T+4}, v{T+4}, v{T+5}", needs="csp"), V(f"v_add_f32 v{T+6}, v{T+6}, v{T+7}"),
        V(f"v_add_f32 v{T+8}, v{T+4}, v{T+6}"),
        Op(f"ds_write_b32 v{V_CSFW}, v{T+8}", lds=["csf"]),
    ]
def eg_chain(ops, w, tt):
    for r in range(4): ops.append(V(f"v_mul_f32 v{tt[r]}, v{w[r]}, v{w[r]}"))
    for r in range(4): ops.append(V(f"v_fma_f32 v{tt[r]}, v{tt[r]}, v{V_C1}, v{V_K0}"))
    for r in range(4): ops.append(V(f"v_mul_f32 v{tt[r]}, v{tt[r]}, v{w[r]}"))
    for r in range(4): ops.append(TR(f"v_exp_f32 v{tt[r]}, v{tt[r]}"))
    for r in range(4): ops.append(V(f"v_fma_f32 v{tt[r]}, v{tt[r]}, v{V_IRSTD}, v{V_IRSTD}"))
    for r in range(4): ops.append(TR(f"v_rcp_f32 v{tt[r]}, v{tt[r]}"))
def ops_EG(tile, EG, split=False):
    T = V_T; ops = ops_setcs(tile)
    def rd(g): return Op(f"ds_read_b128 {vr(T + 4 * (g & 1), 4)}, v{V_CSRD} offset:{32 * g}", lds=[f"cs{g}"])
    ops += [rd(0), rd(1)]
    for g in range(4):
        cs = T + 4 * (g & 1); gg = T + 8; idx = [4 * g + r for r in range(4)]; tt = [EG + i for i in idx]
        if split and g >= 2:
            for r in range(4): ops.append(V(f"v_fma_f32 v{tt[r]}, v{cs + r}, v{V_NMEAN}, v{V_ACC1 + idx[r]}", needs=f"cs{g}", gap=("lastm", 14)))
            continue
        for r in range(4): ops.append(V(f"v_fma_f32 v{gg + r}, v{cs + r}, v{V_NMEAN}, v{V_ACC1 + idx[r]}", needs=f"cs{g}", gap=("lastm", 14)))
        if g + 2 < 4: ops.append(rd(g + 2))
        eg_chain(ops, [gg + r for r in range(4)], tt)
        for r in range(4): ops.append(V(f"v_mul_f32 v{tt[r]}, v{tt[r]}, v{gg + r}"))
    return ops
def ops_EG2(EG):
    T = V_T; ops = []
    for g in (2, 3):
        w = [EG + 4 * g + r for r in range(4)]; tt = [T + 8 + r for r in range(4)]
        eg_chain(ops, w, tt)
        for r in range(4): ops.append(V(f"v_mul_f32 v{w[r]}, v{w[r]}, v{tt[r]}"))
    return ops
def ops_EU(tile, EG, soff_ops):
    T = V_T; ops = ops_setcs(tile) + soff_ops
    def rd(g): return Op(f"ds_read_b128 {vr(T + 4 * (g & 1), 4)}, v{V_CSRD} offset:{32 * g}", lds=[f"cs{g}"])
    ops += [rd(0), rd(1)]
    for g in range(4):
        cs = T + 4 * (g & 1); t = T + 8
        for r in range(4): ops.append(V(f"v_fma_f32 v{t + r}, v{cs + r}, v{V_NMEAN}, v{V_ACC2 + 4 * g + r}", needs=f"cs{g}", gap=("lastm", 14)))
        if g + 2 < 4: ops.append(rd(g + 2))
        for r in range(4): ops.append(V(f"v_mul_f32 v{t + r}, v{t + r}, v{EG + 4 * g + r}"))
        d = EG + 8 * (g >> 1) + 2 * (g & 1)
        ops.append(V(f"v_cvt_pk_bf16_f32 v{d}, v{t}, v{t + 1}"))
        ops.append(V(f"v_cvt_pk_bf16_f32 v{d + 1}, v{t + 2}, v{t + 3}"))
        if g & 1:
            ops.append(Op(f"buffer_store_dwordx4 {vr(EG + 8 * (g >> 1), 4)}, v{V_L16}, {sr(SRD_WS,4)}, s{S_T1} offen offset:{1024 * (g >> 1)}{' sc1' if FUSED['on'] else ''}", vm=["hst"]))
    return ops
def ops_SM1(tile):
    T = V_T; ops = ops_setcs(tile)
    CS = V_E + 16
    for g in range(4): ops.append(Op(f"ds_read_b128 {vr(CS + 4 * g, 4)}, v{V_CSRD} offset:{32 * g}", lds=[f"cs{g}"]))
    for g in range(4):
        for r in range(4):
            i = 4 * g + r
            ops.append(V(f"v_fma_f32 v{V_ACC1 + i}, v{CS + i}, v{V_NMEAN}, v{V_ACC1 + i}", needs=f"cs{g}", gap=("lastm", 14)))
    P = T
    for q in range(8): ops.append(V(f"v_cvt_pk_bf16_f32 v{P + q}, v{V_ACC1 + 2 * q}, v{V_ACC1 + 2 * q + 1}"))
    ops.append(Op(["s_nop 1", f"v_mfma_f32_32x32x16_bf16 {vr(V_ACC1,16)}, {vr(V_A0,4)}, {vr(P,4)}, 0",
                   f"v_mfma_f32_32x32x16_bf16 {vr(V_ACC1,16)}, {vr(V_A1,4)}, {vr(P+4,4)}, {vr(V_ACC1,16)}"], cost=4, mark="pq"))
    p = lambda i: V_ACC1 + i
    mx, mn = T + 8, T + 9
    ops.append(V(f"v_max3_f32 v{mx}, v{p(0)}, v{p(1)}, v{p(2)}", gap=("pq", 14)))
    ops.append(V(f"v_min3_f32 v{mn}, v{p(0)}, v{p(1)}, v{p(2)}"))
    for i in range(3, 15, 2):
        ops.append(V(f"v_max3_f32 v{mx}, v{mx}, v{p(i)}, v{p(i+1)}"))
        ops.append(V(f"v_min3_f32 v{mn}, v{mn}, v{p(i)}, v{p(i+1)}"))
    ops.append(V(f"v_max_f32 v{mx}, v{mx}, v{p(15)}")); ops.append(V(f"v_min_f32 v{mn}, v{mn}, v{p(15)}"))
    ops.append(V(f"v_mul_f32 v{mx}, v{mx}, v{V_CLOG}")); ops.append(V(f"v_mul_f32 v{mn}, v{mn}, v{V_CLOG}"))
    for i in range(16):
        ops.append(V(f"v_fma_f32 v{V_E + i}, v{p(i)}, v{V_CLOG}, -v{mx}"))
        ops.append(V(f"v_fma_f32 v{V_E + 16 + i}, -v{p(i)}, v{V_CLOG}, v{mn}"))
    for i in range(32): ops.append(TR(f"v_exp_f32 v{V_E + i}, v{V_E + i}"))
    return ops
def ops_SM2():
    T = V_T; ops = []
    s0, s1, s2, s3 = T, T + 1, T + 2, T + 3
    ops += [V(f"v_add_f32 v{s0}, v{V_E}, v{V_E + 1}"), V(f"v_add_f32 v{s1}, v{V_E + 2}, v{V_E + 3}"),
            V(f"v_add_f32 v{s2}, v{V_E + 16}, v{V_E + 17}"), V(f"v_add_f32 v{s3}, v{V_E + 18}, v{V_E + 19}")]
    for i in range(4, 16, 2):
        ops += [V(f"v_add_f32 v{s0}, v{s0}, v{V_E + i}"), V(f"v_add_f32 v{s1}, v{s1}, v{V_E + i + 1}"),
                V(f"v_add_f32 v{s2}, v{s2}, v{V_E + 16 + i}"), V(f"v_add_f32 v{s3}, v{s3}, v{V_E + 17 + i}")]
    ops += [V(f"v_add_f32 v{s0}, v{s0}, v{s1}"), V(f"v_add_f32 v{s2}, v{s2}, v{s3}"),
            TR(f"v_rcp_f32 v{s0}, v{s0}"), TR(f"v_rcp_f32 v{s2}, v{s2}"), V("s_nop 0")]
    for i in range(16): ops.append(V(f"v_mul_f32 v{V_E + i}, v{V_E + i}, v{s0}"))
    for i in range(16, 32): ops.append(V(f"v_mul_f32 v{V_E + i}, v{V_E + i}, v{s2}"))
    for q in range(16): ops.append(V(f"v_cvt_pk_bf16_f32 v{V_E + q}, v{V_E + 2 * q}, v{V_E + 2 * q + 1}"))
    return ops
def ops_EV():
    T = V_T; l = V_LANE
    ops = [Op(f"ds_read_b32 v{T+8}, v{V_CSFW}", lds=["csv"])]
    vp = T
    ops += [V(f"v_lshrrev_b32 v{T+9}, 5, v{l}"), V(f"v_lshlrev_b32 v{T+9}, 4, v{T+9}"),
            V([f"s_lshl_b32 s{S_T0}, s{S_TG}, 7", f"s_add_u32 s{S_T0}, s{S_T0}, {RQ_OFF}", f"v_add_u32 v{T+10}, s{S_T0}, v{T+9}"], cost=3)]
    def rd(g):
        R = V_E + 16 + 8 * (g & 1)
        return Op([f"ds_read_b128 {vr(R,4)}, v{T+10} offset:{32 * g}", f"ds_read_b128 {vr(R+4,4)}, v{T+10} offset:{512 + 32 * g}"], cost=2, lds=[f"rq{g}", f"rq{g}"])
    ops += [rd(0), rd(1)]
    for g in range(4):
        R = V_E + 16 + 8 * (g & 1); Q = R + 4
        for r in range(4): ops.append(V(f"v_mul_f32 v{Q + r}, v{Q + r}, v{T + 8}", needs=[f"rq{g}", "csv"]))
        for r in range(4): ops.append(V(f"v_fma_f32 v{Q + r}, v{V_ACC2 + 4 * g + r}, v{R + r}, v{Q + r}", gap=("lastm", 14)))
        ops.append(V(f"v_cvt_pk_bf16_f32 v{vp + 2 * g}, v{Q}, v{Q + 1}"))
        ops.append(V(f"v_cvt_pk_bf16_f32 v{vp + 2 * g + 1}, v{Q + 2}, v{Q + 3}"))
        if g + 2 < 4: ops.append(rd(g + 2))
    ops += [V([f"s_lshl_b32 s{S_T0}, s{S_W}, 11", f"s_add_u32 s{S_T0}, s{S_T0}, {VIMG_OFF}", f"v_add_u32 v{T+9}, s{S_T0}, v{V_L16}"], cost=3),
            Op(f"ds_write_b128 v{T+9}, {vr(vp,4)}", lds=["vw"]), Op(f"ds_write_b128 v{T+9}, {vr(vp+4,4)} offset:1024", lds=["vw"])]
    return ops
def ops_KVW():
    T = V_T; l = V_LANE
    ops = [V(f"v_and_b32 v{T+9}, 31, v{l}"), V(f"v_lshlrev_b32 v{T+8}, 6, v{T+9}"), V(f"v_lshrrev_b32 v{T+9}, 5, v{l}"),
           V(f"v_lshl_add_u32 v{T+8}, v{T+9}, 11, v{T+8}"),
           V([f"s_lshl_b32 s{S_T0}, s{S_W}, 12", f"s_add_u32 s{S_T0}, s{S_T0}, {PHI_OFF}", f"v_add_u32 v{T+8}, s{S_T0}, v{T+8}"], cost=3)]
    for q in range(4): ops.append(Op(f"ds_write_b128 v{T+8}, {vr(V_E + 4 * q, 4)} offset:{16 * q}", lds=["kvw"], cost=2))
    return ops

def tb(T): return S_TB + T if T < 5 else 73
def unit_addr(T, q):
    if T == 0: return q * 8192
    if T % 2 == 1: return q * 8192 if q < 4 else 98304 + (q - 4) * 8192
    return 32768 + q * 8192
def dma_w_units(a, T, tile, units):
    srd, voff, stride = tile
    for q in units:
        a(f"s_add_u32 m0, s{S_W1K}, {unit_addr(T, q)}")
        a(f"s_add_u32 s{S_T2}, s{tb(T)}, {q * 64 * stride}")
        a(f"buffer_load_dwordx4 v{voff}, {sr(srd,4)}, s{S_T2} offen lds")
        a.vm_issue(f"T{T}")
def dma_op(T, tile, q):
    srd, voff, stride = tile
    return Op([f"s_add_u32 m0, s{S_W1K}, {unit_addr(T, q)}", f"s_add_u32 s{S_T2}, s{tb(T)}, {q * 64 * stride}",
               f"buffer_load_dwordx4 v{voff}, {sr(srd,4)}, s{S_T2} offen lds"], vm=[f"T{T}"])
def dma_x(a, s):
    base = [65536, 81920, 98304, 114688, 131072, 147456, 65536, 81920][s]
    for e in range(2):
        a(f"s_lshl_b32 s{S_T3}, s{S_W1K}, 1")
        a(f"s_add_u32 m0, s{S_T3}, {base + e * 1024}")
        a(f"s_add_u32 s{S_T2}, s{S_XB}, {e * 8192 + s * 128}")
        a(f"buffer_load_dwordx4 v{V_X0 if e == 0 else V_X1}, {sr(SRD_X,4)}, s{S_T2} offen lds")
        a.vm_issue(f"x{s}")

def gen_k1(a, name="k1_kernel"):
    TQ = (SRD_WQ, V_WQ, 3072); TG = (SRD_WG, V_WF, 2752); TU = (SRD_WU, V_WF, 2752)
    W = Weaver(a)
    l = V_LANE; T = V_T
    a.lines.append(kernel_header(name))
    a(f"""
s_cmp_ge_u32 s2, 256
s_cbranch_scc1 k1_exit
s_load_dwordx16 s[8:23], s[0:1], 0
s_getpc_b64 s[90:91]
v_and_b32 v2, 63, v0
v_lshrrev_b32 v3, 6, v0
v_lshlrev_b32 v2, 7, v2
v_lshl_add_u32 v2, v3, 13, v2
v_min_u32 v2, {CODE["total"] - 64}, v2
global_load_dword v15, v2, s[90:91]
s_load_dwordx4 s[24:27], s[0:1], 64
s_load_dwordx2 s[28:29], s[0:1], 80
v_and_b32 v{l}, 63, v0
v_lshrrev_b32 v{T}, 6, v0
s_and_b32 s{S_T0}, s2, 7
s_lshr_b32 s{S_T1}, s2, 3
v_readfirstlane_b32 s{S_W}, v{T}
s_lshr_b32 s{S_T2}, s{S_T0}, 2
s_and_b32 s{S_T3}, s{S_T0}, 3
s_and_b32 s{S_M}, s{S_T1}, 7
s_lshl_b32 s{S_T2}, s{S_T2}, 3
s_add_u32 s{S_M}, s{S_M}, s{S_T2}
s_lshr_b32 s{S_T1}, s{S_T1}, 3
s_lshl_b32 s{S_T3}, s{S_T3}, 2
s_add_u32 s{S_C}, s{S_T1}, s{S_T3}
s_and_b32 s{S_TG}, s{S_W}, 3
s_lshr_b32 s{S_HB}, s{S_W}, 2
s_lshl_b32 s{S_W1K}, s{S_W}, 10
v_lshrrev_b32 v{T}, 3, v{l}
v_and_b32 v{T+1}, 7, v{l}
v_lshrrev_b32 v{T+2}, 4, v{l}
v_xor_b32 v{T+3}, v{T+1}, v{T+2}
v_lshlrev_b32 v{T+3}, 4, v{T+3}
v_lshl_add_u32 v{V_X0}, v{T}, 10, v{T+3}
v_xor_b32 v{V_X1}, 64, v{V_X0}
v_and_b32 v{T+2}, 1, v{T+2}
v_lshlrev_b32 v{T+2}, 2, v{T+2}
v_xor_b32 v{T+3}, v{T+1}, v{T+2}
v_lshlrev_b32 v{T+3}, 4, v{T+3}
v_mul_u32_u24 v{T+4}, 3072, v{T}
v_add_u32 v{V_WQ}, v{T+4}, v{T+3}
v_mul_u32_u24 v{T+4}, 2752, v{T}
v_add_u32 v{V_WF}, v{T+4}, v{T+3}
s_lshl_b32 s{S_XB}, s{S_M}, 17
s_lshl_b32 s{S_T0}, s{S_W}, 14
s_add_u32 s{S_XB}, s{S_XB}, s{S_T0}
s_lshr_b32 s{S_T1}, s{S_C}, 1
s_mul_i32 s{S_T2}, s{S_W}, {8*3072}
s_mul_i32 s{S_T3}, s{S_W}, {8*2752}
s_waitcnt lgkmcnt(0)
""")
    def srd(base, p, size):
        a(f"s_mov_b32 s{base}, s{p}\ns_mov_b32 s{base+1}, s{p+1}\ns_mov_b32 s{base+2}, {size}\ns_mov_b32 s{base+3}, 0x00020000")
    srd(SRD_X, 8, 2048 * 1024); srd(SRD_WQ, 10, 512 * 3072); srd(SRD_PHI, 12, 32 * 512)
    srd(SRD_WG, 18, 512 * 2752); srd(SRD_WU, 20, 512 * 2752); srd(SRD_WS, 28, 0x10000000)
    a(f"""
s_mov_b32 s92, s26
s_mov_b32 s93, s27
s_mov_b32 s94, 256
s_mov_b32 s95, 0x00020000
s_bitcmp1_b32 s{S_C}, 0
s_cbranch_scc1 k1_ffn_setup
s_lshl_b32 s{S_T0}, s{S_T1}, 7
s_add_u32 s{S_TB+2}, s{S_T2}, s{S_T0}
s_add_u32 s{S_TB+0}, s{S_TB+2}, 1024
s_add_u32 s{S_TB+1}, s{S_TB+2}, 2048
s_mov_b32 s{S_U0}, s{S_T1}
s_branch k1_att
k1_ffn_setup:
; c' = s_T1 : units: c'<6: 3c'.. ; c'==6: 18,19 ; c'==7: 20,21
s_mul_i32 s{S_U0}, s{S_T1}, 3
s_cmp_eq_u32 s{S_T1}, 7
s_cselect_b32 s{S_T0}, 1, 0
s_sub_u32 s{S_U0}, s{S_U0}, s{S_T0}
s_add_u32 s{S_U1}, s{S_U0}, 1
s_add_u32 s77, s{S_U0}, 2
s_lshl_b32 s{S_T0}, s{S_U0}, 7
s_add_u32 s{S_TB+0}, s{S_T3}, s{S_T0}
s_mov_b32 s{S_TB+1}, s{S_TB+0}
s_add_u32 s{S_TB+2}, s{S_TB+0}, 128
s_mov_b32 s{S_TB+3}, s{S_TB+2}
s_add_u32 s{S_TB+4}, s{S_TB+0}, 256
s_mov_b32 s73, s{S_TB+4}
s_cmp_ge_u32 s{S_T1}, 6
s_cbranch_scc1 k1_ffn4
s_branch k1_ffn6
""")
    def setup_rest():
        a(f"""
v_lshlrev_b32 v{V_L16}, 4, v{l}
v_and_b32 v{T}, 31, v{l}
v_lshrrev_b32 v{T+1}, 5, v{l}
v_bfe_u32 v{T+2}, v{l}, 1, 3
v_xor_b32 v{T+2}, v{T+2}, v{T+1}
s_lshl_b32 s{S_T0}, s{S_TG}, 12
s_add_u32 s{S_T0}, s{S_T0}, 65536
v_lshlrev_b32 v{T+3}, 7, v{T}
v_add_u32 v{T+3}, s{S_T0}, v{T+3}
""")
        for i in range(4):
            a(f"s_add_u32 s{S_T1}, s{S_TG}, {i}\ns_and_b32 s{S_T1}, s{S_T1}, 3\ns_lshl_b32 s{S_T1}, s{S_T1}, 1\n"
              f"v_xor_b32 v{T+4}, s{S_T1}, v{T+2}\nv_lshl_add_u32 v{V_XA+i}, v{T+4}, 4, v{T+3}")
        a(f"""
v_bfe_u32 v{T+4}, v{l}, 2, 2
v_lshl_add_u32 v{T+5}, v{T+1}, 3, v{T+4}
v_lshlrev_b32 v{T+5}, 7, v{T+5}
v_bfe_u32 v{T+6}, v{l}, 4, 1
v_lshlrev_b32 v{T+6}, 1, v{T+6}
v_bfe_u32 v{T+7}, v{l}, 1, 1
v_add_u32 v{T+6}, v{T+6}, v{T+7}
s_lshl_b32 s{S_T0}, s{S_HB}, 2
v_add_u32 v{T+6}, s{S_T0}, v{T+6}
v_lshrrev_b32 v{T+7}, 1, v{T+4}
v_lshlrev_b32 v{T+7}, 2, v{T+7}
v_xor_b32 v{T+6}, v{T+6}, v{T+7}
v_lshl_add_u32 v{T+5}, v{T+6}, 4, v{T+5}
v_and_b32 v{T+7}, 1, v{l}
v_lshl_add_u32 v{T+5}, v{T+7}, 3, v{T+5}
""")
        for i in range(4):
            a(f"s_add_u32 s{S_T1}, s{S_TG}, {i}\ns_and_b32 s{S_T1}, s{S_T1}, 3\ns_lshl_b32 s{S_T1}, s{S_T1}, 11\nv_add_u32 v{V_WA+i}, s{S_T1}, v{T+5}")
        a(f"""
v_and_b32 v{T+4}, 15, v{l}
v_bfe_u32 v{T+6}, v{l}, 4, 1
v_cmp_eq_u32 vcc, v{T+4}, v{T+6}
v_mov_b32 v{T+7}, 0x3f803f80
v_lshrrev_b32 v{T+6}, 4, v{l}
v_cndmask_b32 v{V_SEL}, 0, v{T+7}, vcc
v_mov_b32 v{V_SEL+1}, v{V_SEL}
v_mov_b32 v{V_SEL+2}, v{V_SEL}
v_mov_b32 v{V_SEL+3}, v{V_SEL}
v_mov_b32 v{T+10}, 0x3f803f80
v_mov_b32 v{T+11}, 0x3f803f80
v_lshlrev_b32 v{T+6}, 6, v{T+6}
v_lshl_add_u32 v{T+6}, v{T+4}, 8, v{T+6}
s_lshl_b32 s{S_T0}, s{S_HB}, 9
s_lshl_b32 s{S_T1}, s{S_TG}, 2
s_add_u32 s{S_T1}, s{S_T0}, s{S_T1}
s_add_u32 s{S_T1}, s{S_T1}, {CSP_OFF}
v_add_u32 v{V_CSADD}, s{S_T1}, v{T+6}
v_lshlrev_b32 v{T+6}, 4, v{T+1}
s_lshl_b32 s{S_T1}, s{S_W}, 7
s_add_u32 s{S_T1}, s{S_T1}, {CSF_OFF}
v_add_u32 v{V_CSRD}, s{S_T1}, v{T+6}
v_lshlrev_b32 v{T+6}, 2, v{T}
v_add_u32 v{V_CSFW}, s{S_T1}, v{T+6}
s_mov_b32 s{S_EXC}, 0x00030003
s_mov_b32 s{S_EXC+1}, 0x00030003
s_mov_b32 s78, 0x0001ffff
s_mov_b32 s80, 0xffff0001
s_lshl_b32 s{S_TB32}, s{S_M}, 2
s_add_u32 s{S_TB32}, s{S_TB32}, s{S_TG}
s_mul_i32 s{S_HST}, s{S_TB32}, {86*1024}
""")

    def touch_w(tiles, t, vreg=None):
        srd_, voff, stride = tiles[t]
        wv = 4 + (t % 4)
        l2 = a.uid("pfw")
        vt = V_T + 9 if vreg is None else vreg
        a(f"""
s_cmp_lg_u32 s{S_W}, {wv}
s_cbranch_scc1 {l2}
s_and_b32 s{S_T0}, s{S_M}, 7
s_mul_i32 s{S_T0}, s{S_T0}, {64 * stride}
s_add_u32 s{S_T0}, s{S_T0}, s{tb(t)}
s_sub_u32 s{S_T0}, s{S_T0}, {8 * wv * stride}
v_mul_u32_u24 v{vt}, {stride}, v{l}
buffer_load_dword v15, v{vt}, {sr(srd_,4)}, s{S_T0} offen
buffer_load_dword v15, v{vt}, {sr(srd_,4)}, s{S_T0} offen offset:124
{l2}:
""")
    def touch_p3w():
        l2 = a.uid("p3w")
        a(f"""
s_lshr_b32 s{S_T0}, s2, 3
s_lshr_b32 s{S_T1}, s{S_T0}, 4
s_lshl_b32 s{S_T1}, s{S_T1}, 3
s_and_b32 s{S_T0}, s{S_T0}, 7
s_add_u32 s{S_T0}, s{S_T0}, s{S_T1}
s_lshl_b32 s{S_T0}, s{S_T0}, 3
s_add_u32 s{S_T0}, s{S_T0}, s{S_W}
s_lshl_b32 s{S_T0}, s{S_T0}, 14
s_mov_b32 s99, 0x00020000
s_cmp_ge_u32 s{S_T0}, {1376*1024}
s_cbranch_scc1 {l2}_o
s_mov_b32 s96, s22
s_mov_b32 s97, s23
s_mov_b32 s98, {1376*1024}
s_branch {l2}_g
{l2}_o:
s_sub_u32 s{S_T0}, s{S_T0}, {1376*1024}
s_mov_b32 s96, s14
s_mov_b32 s97, s15
s_mov_b32 s98, {512*1024}
{l2}_g:
v_lshlrev_b32 v16, 7, v{l}
buffer_load_dword v15, v16, s[96:99], s{S_T0} offen
s_add_u32 s{S_T0}, s{S_T0}, 8192
buffer_load_dword v15, v16, s[96:99], s{S_T0} offen
""")
    def startup(tiles, att):
        a.vm_reset(); STAMP["n"] = 0; stamp_init(a); stamp(a); stamp_rt(a, 14)
        def issue_stage(s):
            dma_x(a, s)
            dma_w_units(a, 0, tiles[0], [s]); a.vm[-1] = f"T0u{s}"
        lab = a.uid("pf")
        a(f"""
s_cmp_ge_u32 s{S_W}, 4
s_cbranch_scc1 {lab}_w
s_lshr_b32 s{S_T0}, s2, 3
s_lshl_b32 s{S_T0}, s{S_T0}, 15
s_lshl_b32 s{S_T1}, s{S_W}, 13
s_add_u32 s{S_T0}, s{S_T0}, s{S_T1}
s_bfe_u32 s{S_T1}, s2, 0x10002
s_lshl_b32 s{S_T1}, s{S_T1}, 20
s_add_u32 s{S_T0}, s{S_T0}, s{S_T1}
v_lshlrev_b32 v{T}, 7, v{l}
buffer_load_dword v{V_E}, v{T}, {sr(SRD_X,4)}, s{S_T0} offen
s_branch {lab}_e
{lab}_w:
""")
        touch_w(tiles, 0)
        a(f"{lab}_e:")
        issue_stage(0)
        PRE_WAIT = True
        if att:
            a(f"""
v_bfe_u32 v{T}, v{l}, 2, 1
v_bfe_u32 v{T+1}, v{l}, 3, 2
v_and_b32 v{T+2}, 3, v{l}
v_lshl_add_u32 v{T+1}, v{T+1}, 2, v{T+2}
v_lshrrev_b32 v{T+2}, 5, v{l}
v_lshlrev_b32 v{T+2}, 2, v{T+2}
v_lshl_add_u32 v{T+2}, v{T}, 4, v{T+2}
v_lshl_add_u32 v{T+1}, v{T+2}, 4, v{T+1}
v_lshlrev_b32 v{T+1}, 1, v{T+1}
s_lshl_b32 s{S_T0}, s{S_U0}, 1
s_add_u32 s{S_T0}, s{S_T0}, s{S_HB}
s_lshl_b32 s{S_T0}, s{S_T0}, 10
""")
            for j in range(8):
                d = j if j < 4 else 8 + j - 4
                a(f"buffer_load_ushort v{V_ACC2 + 4 + j}, v{T+1}, {sr(SRD_PHI,4)}, s{S_T0} offen offset:{d * 32}")
                a.vm_issue("phi")
        if DBG.get('fineP'): stamp(a)
        setup_rest()
        if DBG.get('fineP'): stamp(a)
        a("s_waitcnt vmcnt(0)")
        a.vm_reset()
        if DBG.get('fineP'): stamp(a)
        issue_stage(1); issue_stage(2); issue_stage(3)
        if DBG.get('fineP'): stamp(a)
        lab = a.uid("su")
        a(f"s_cmp_eq_u32 s{S_HB}, 0")
        a(f"s_cbranch_scc1 {lab}_A")
        vm0 = list(a.vm); st0 = STAMP["n"]
        FS = [V_F, V_E + 16]
        def reads_ops(s):
            xoff = {0: 0, 1: 16384, 2: 32768, 3: 49152, 4: 0, 5: 16384, 6: 0, 7: 16384}[s]
            ops = []
            if s == 4: ops.append(Op([f"v_add_u32 v{V_XA+i}, 0x10000, v{V_XA+i}" for i in range(4)], cost=4))
            if s == 6: ops.append(Op([f"v_add_u32 v{V_XA+i}, 0xffff0000, v{V_XA+i}" for i in range(4)], cost=4))
            for ii in range(4):
                i = 4 * s + ii; F = FS[s & 1] + 4 * ii; off = s * 8192
                ops.append(Op([f"ds_read_b128 {vr(V_X + 4 * i, 4)}, v{V_XA + ii} offset:{xoff}",
                               f"ds_read_b64_tr_b16 {vr(F,2)}, v{V_WA + ii} offset:{off}",
                               f"ds_read_b64_tr_b16 {vr(F+2,2)}, v{V_WA + ii} offset:{off + 512}"], cost=3, lds=[f"su{i}"] * 3))
            return ops
        def dmax_ops(s):
            base = [65536, 81920, 98304, 114688, 131072, 147456, 65536, 81920][s]
            ops = []
            for e in range(2):
                ops.append(Op([f"s_lshl_b32 s{S_T3}, s{S_W1K}, 1", f"s_add_u32 m0, s{S_T3}, {base + e * 1024}", f"s_add_u32 s{S_T2}, s{S_XB}, {e * 8192 + s * 128}",
                               f"buffer_load_dwordx4 v{V_X0 if e == 0 else V_X1}, {sr(SRD_X,4)}, s{S_T2} offen lds"], cost=3, vm=[f"x{s}"]))
            return ops
        def dmaw_ops(Tt, units, tagu=False):
            ops = []
            if DBG.get('noT1') and Tt == 1: return ops
            for q in units:
                o = dma_op(Tt, tiles[Tt], q); o.cost = 3
                if tagu: o.vm = [f"T0u{q}"]
                ops.append(o)
            return ops
        def compute_slots(s, hb):
            slots = []
            for ii in range(4):
                i = 4 * s + ii; F = FS[s & 1] + 4 * ii; X = V_X + 4 * i
                sl = [Op(f"v_mfma_f32_32x32x16_bf16 {vr(V_ACC1,16)}, {vr(F,4)}, {vr(X,4)}, {'0' if i == 0 else vr(V_ACC1,16)}", needs=f"su{i}")]
                if ii == 0: sl.append(Op(f"v_mfma_f32_16x16x32_bf16 {vr(V_CSD,4)}, {vr(F,4)}, {vr(V_SEL,4)}, {'0' if i == 0 else vr(V_CSD,4)}"))
                slots.append(sl)
                sl2 = []
                for hh in range(2):
                    Bop = vr(X + 2 * hh, 2) if hb == 1 else vr(T + 10, 2)
                    D = V_ST if hh == 0 else T + 4
                    sl2.append(Op(f"v_mfma_f32_4x4x4_16b_bf16 {vr(D,4)}, {vr(X + 2 * hh, 2)}, {Bop}, {'0' if i == 0 else vr(D, 4)}"))
                if DBG.get('noST'): sl2 = []
                slots.append(sl2)
            return slots
        for hb in (1, 0):
            if hb == 0:
                a(f"s_branch {lab}_J"); a.label(lab + "_A"); a.vm_reset(vm0); STAMP["n"] = st0
            W.lds_reset()
            for s in range(9):
                eops = []
                if s < 8:
                    if DBG.get('fineS') and s in (2, 3, 4, 5, 6): stamp(a); W.all_done()
                    a.wait_vm([f"x{s}", f"T0u{s}"])
                    if DBG.get('fineS') and s in (3, 4, 5): stamp(a); W.all_done()
                    if s >= 2: W.need([f"su{4 * (s - 2) + 3}"])
                    a("s_barrier")
                    if DBG.get('fineS'):
                        if s in (2, 3, 4, 5, 6): stamp(a); W.all_done()
                    elif s in (0, 4): stamp(a); W.all_done()
                    if s == 0: touch_w(tiles, 1)
                    if s == 3: touch_w(tiles, 2)
                    if s == 6 and len(tiles) > 3: touch_w(tiles, 3)
                    eops += reads_ops(s)
                    if s == 0: eops += dmax_ops(4) + dmaw_ops(0, [4], True) + dmax_ops(5) + dmaw_ops(0, [5], True)
                    if s == 1: eops += dmaw_ops(0, [6, 7], True)
                    if s == 2: eops += dmax_ops(6) + dmaw_ops(1, [0])
                    if s == 3: eops += dmax_ops(7) + dmaw_ops(1, [1])
                    if s == 4: eops += dmaw_ops(1, [2, 4, 5])
                    if s == 5: eops += dmaw_ops(1, [3, 6, 7])
                if s >= 1: W.weave(compute_slots(s - 1, hb), eops, 0, 7, dist=0)
                else:
                    for o in eops: W.emit(o)
        a.label(lab + "_J")
        a("s_nop 7")
        for t in cs_write(0).text: a(t)
        for r in range(4): a(f"v_add_f32 v{V_ST + r}, v{V_ST + r}, v{T + 4 + r}")
        a(f"""
v_and_b32 v{T}, 3, v{l}
v_cmp_eq_u32 vcc, 1, v{T}
v_cmp_eq_u32 s[82:83], 2, v{T}
v_cmp_eq_u32 s[70:71], 3, v{T}
s_nop 1
v_cndmask_b32 v{V_ST}, v{V_ST}, v{V_ST+1}, vcc
v_cndmask_b32 v{V_ST}, v{V_ST}, v{V_ST+2}, s[82:83]
v_cndmask_b32 v{V_ST}, v{V_ST}, v{V_ST+3}, s[70:71]
v_mov_b32 v{V_ST+1}, v{V_ST}
s_nop 1
v_permlane32_swap_b32 v{V_ST}, v{V_ST+1}
v_add_f32 v{V_ST}, v{V_ST}, v{V_ST+1}
v_and_b32 v{T}, 31, v{l}
v_lshlrev_b32 v{V_CSPR}, 4, v{T}
s_lshl_b32 s{S_T0}, s{S_TG}, 5
v_add_u32 v{T}, s{S_T0}, v{T}
v_lshlrev_b32 v{T}, 2, v{T}
v_add_u32 v{T}, {ST_OFF}, v{T}
s_lshl_b32 s{S_T0}, s{S_HB}, 9
v_add_u32 v{T+1}, s{S_T0}, v{T}
ds_write_b32 v{T+1}, v{V_ST}
s_add_u32 s{S_T0}, s{S_T0}, {CSP_OFF}
v_add_u32 v{V_CSPR}, s{S_T0}, v{V_CSPR}
""")
        a.wait_vm("T1", " lgkmcnt(0)")
        a("s_barrier")
        stamp(a)
        W.lds_reset(); W.marks["lastm"] = W.n - 100
        a(f"ds_read_b32 v{T+2}, v{T}\nds_read_b32 v{T+3}, v{T} offset:512")
        W.lq += ["st", "st"]
        for i in range(LA): W.emit(rd_ops(i, 1))
        for o in ops_setcs_real(0): W.emit(o)
        if len(tiles) > 4: touch_w(tiles, 4, 16); touch_w(tiles, 5, 16)
        W.need(["st"])
        a(f"""
v_mul_f32 v{T+2}, {flit(1/512)}, v{T+2}
v_mul_f32 v{T+3}, {flit(1/512)}, v{T+3}
v_fma_f32 v{T+3}, -v{T+2}, v{T+2}, v{T+3}
v_max_f32 v{T+3}, 0, v{T+3}
v_add_f32 v{T+3}, {flit(1e-5)}, v{T+3}
v_sub_f32 v{V_NMEAN}, 0, v{T+2}
v_rsq_f32 v{V_RSTD}, v{T+3}
v_mov_b32 v{V_IRSTD}, v{T+3}
s_nop 0
v_mul_f32 v{V_K0}, {flit(C0)}, v{V_RSTD}
v_mul_f32 v{V_C1}, v{V_RSTD}, v{V_RSTD}
v_mul_f32 v{V_C1}, v{V_C1}, v{V_RSTD}
v_mul_f32 v{V_C1}, {flit(C1)}, v{V_C1}
""")
        if att:
            a(f"""
v_mul_f32 v{V_CLOG}, {flit(LOG2E)}, v{V_RSTD}
v_mul_f32 v{T+4}, v{V_NMEAN}, v{V_RSTD}
ds_write_b32 v{T}, v{V_RSTD} offset:{RQ_OFF - ST_OFF}
ds_write_b32 v{T}, v{T+4} offset:{RQ_OFF - ST_OFF + 512}
v_bfe_u32 v{T+5}, v{l}, 2, 1
v_cmp_eq_u32 vcc, 0, v{T+5}
""")
            W.lq += ["rqw", "rqw"]
            a.wait_vm("phi")
            for q in range(4): a(f"v_lshl_or_b32 v{V_E+q}, v{V_ACC2+5+2*q}, 16, v{V_ACC2+4+2*q}")
            for q in range(4): a(f"v_cndmask_b32 v{V_A0+q}, 0, v{V_E+q}, vcc")
            for q in range(4): a(f"v_cndmask_b32 v{V_A1+q}, v{V_E+q}, 0, vcc")

    def step(Tn, tiles, NT, swapped, eops, mid=None):
        if DBG.get('noE'): eops = [[] for _ in eops]
        acc = V_ACC1 if Tn % 2 == 0 else V_ACC2
        last = (Tn == NT - 1)
        slots = []
        for i in range(32):
            sl = []
            if Tn % 2 == 1 and i + LA == 16: sl.append(Op([f"v_add_u32 v{V_WA+k}, 0x10000, v{V_WA+k}" for k in range(4)]))
            if i + LA < 32: sl.append(rd_ops(i + LA, Tn))
            sl.append(mfma_op(i, Tn, acc, swapped))
            if i % 4 == 0 and not DBG.get('noCS'): sl.append(cs_op(i))
            if not DBG.get('noDMA') and not last and Tn + 1 >= 2 and i < 16 and i % 2 == 1: sl.append(dma_op(Tn + 1, tiles[Tn + 1], i // 2))
            slots.append(sl)
        if mid is None:
            W.weave(slots[:30], eops[0], 0, 29)
        else:
            k = mid[0]
            W.weave(slots[:k], eops[0])
            mid[1]()
            W.weave(slots[k:30], eops[1], 0, 29 - k) if k < 30 else None
        W.emit(cs_write(Tn))
        if not last:
            for i in range(4): a(f"v_add_u32 v{V_WA+i}, 0xffff8000, v{V_WA+i}")
        n = a.vm_wait_count(f"T{Tn+1}") if not last else None
        W.wait_all_lds(f" vmcnt({min(n,63)})" if n is not None else "")
        a("s_barrier")
        stamp(a)
        if not last:
            W.emit(rd_ops(0, Tn + 1)); W.emit(rd_ops(1, Tn + 1))
        sc = ops_setcs_real(Tn)
        W.emit(sc[0])
        W.emit(slots[30][-1])
        if not last: W.emit(rd_ops(2, Tn + 1))
        W.emit(slots[31][-1])
        W.marks["lastm"] = W.n
        for o in sc[1:]: W.emit(o)
        if Tn == NT - 2 and NT in (4, 6) and TOUCH_P3 and not DBG.get('noP3'): touch_p3w()

    def soff_ops(unit):
        return [V([f"s_lshl_b32 s{S_T1}, s{unit}, 12", f"s_lshl_b32 s{S_T2}, s{S_HB}, 11", f"s_add_u32 s{S_T1}, s{S_T1}, s{S_T2}", f"s_add_u32 s{S_T1}, s{S_T1}, s{S_HST}"], cost=2)]
    def run(ops):
        for o in ops: W.emit(o)
    def get_nonce(sreg, vtmp):
        lab = a.uid("nn")
        a(f"""
v_mov_b32 v{vtmp}, 0
{lab}:
buffer_load_dword v{vtmp+1}, v{vtmp}, s[92:95], 0 offen sc1
s_waitcnt vmcnt(0)
v_readfirstlane_b32 s{sreg}, v{vtmp+1}
s_cmp_lg_u32 s{sreg}, 0
s_cbranch_scc1 {lab}_ok
s_sleep 4
s_branch {lab}
{lab}_ok:
""")
    def kvx():
        lab = a.uid("kvx")
        a(f"""
s_cmp_ge_u32 s{S_TG}, 2
s_cbranch_scc1 {lab}
v_lshrrev_b32 v{T+9}, 5, v{l}
v_bfe_u32 v{T+10}, v{l}, 2, 2
v_lshl_add_u32 v{T+10}, v{T+9}, 2, v{T+10}
v_lshlrev_b32 v{T+10}, 6, v{T+10}
v_bfe_u32 v{T+11}, v{l}, 4, 1
v_lshl_add_u32 v{T+10}, v{T+11}, 5, v{T+10}
v_and_b32 v{T+8}, 3, v{l}
v_lshl_add_u32 v{T+10}, v{T+8}, 3, v{T+10}
s_lshl_b32 s{S_T0}, s{S_TG}, 11
s_lshl_b32 s{S_T1}, s{S_HB}, 14
s_add_u32 s{S_T0}, s{S_T0}, s{S_T1}
s_add_u32 s{S_T0}, s{S_T0}, {PHI_OFF}
v_add_u32 v{T+8}, s{S_T0}, v{T+10}
v_cmp_eq_u32 vcc, s{S_TG}, v{T+11}
v_and_b32 v{T+6}, 15, v{l}
v_lshlrev_b32 v{T+5}, 4, v{T+9}
v_lshl_add_u32 v{T+7}, v{T+9}, 4, v{T+6}
v_lshlrev_b32 v{T+7}, 4, v{T+7}              ; (hf*16+d)*16
s_lshl_b32 s{S_T0}, s{S_HB}, 13
s_add_u32 s{S_T0}, s{S_T0}, {VIMG_OFF}
v_cndmask_b32 v{T+10}, 0, -1, vcc
v_add_u32 v{T+9}, s{S_T0}, v{V_L16}
v_mov_b32 v{T+11}, 0x3f803f80
s_cmp_eq_u32 s{S_TG}, 0
s_mov_b32 s70, 0x0000ffff
s_mov_b32 s71, 0x00010000
s_cselect_b32 s82, s70, 0xffff0000
s_cselect_b32 s70, s71, 1
s_mov_b32 s83, s82
s_mov_b32 s71, s70
s_lshl_b32 s{S_T1}, s{S_U0}, 2
s_add_u32 s{S_T1}, s{S_T1}, s{S_TG}
s_lshl_b32 s{S_T2}, s{S_HB}, 1
s_add_u32 s{S_T1}, s{S_T1}, s{S_T2}
s_lshl_b32 s{S_T1}, s{S_T1}, 4
s_add_u32 s{S_T1}, s{S_T1}, s{S_M}
s_lshl_b32 s{S_T2}, s{S_T1}, 7
s_add_u32 s{S_T2}, s{S_T2}, {ZP_OFF}
s_lshl_b32 s{S_T1}, s{S_T1}, 11
s_add_u32 s{S_T1}, s{S_T1}, {KVP_OFF}
s_waitcnt lgkmcnt(0)
""")
        D = V_E + 16
        def rd(k):
            tgp, ks = k >> 1, k & 1
            PF = V_E + 8 * (k & 1); Bp = PF + 4
            a(f"ds_read_b64_tr_b16 {vr(PF, 2)}, v{T+8} offset:{tgp * 4096 + 1024 * ks}")
            a(f"ds_read_b64_tr_b16 {vr(PF + 2, 2)}, v{T+8} offset:{tgp * 4096 + 1024 * ks + 512}")
            a(f"ds_read_b128 {vr(Bp, 4)}, v{T+9} offset:{tgp * 2048 + 1024 * ks}")
        rd(0); rd(1)
        for k in range(8):
            PF = V_E + 8 * (k & 1); Bp = PF + 4
            a(f"s_waitcnt lgkmcnt({3 if k < 7 else 0})")
            for q in range(4): a(f"v_bfi_b32 v{Bp + q}, v{T+10}, v{Bp + q}, v{T+11}")
            a("s_nop 1")
            a(f"v_mfma_f32_32x32x16_bf16 {vr(D,16)}, {vr(PF,4)}, {vr(Bp,4)}, {'0' if k == 0 else vr(D,16)}")
            if k + 2 < 8: rd(k + 2)
        a("s_nop 7\ns_nop 7")
        a(f"s_mov_b64 exec, {sr(82,2)}")
        for g in range(4):
            a(f"buffer_store_dwordx4 {vr(D + 4 * g, 4)}, v{T+7}, {sr(SRD_WS,4)}, s{S_T1} offen offset:{512 * g} sc1")
        a(f"s_mov_b64 exec, {sr(70,2)}")
        for g in range(4):
            a(f"buffer_store_dwordx4 {vr(D + 4 * g, 4)}, v{T+5}, {sr(SRD_WS,4)}, s{S_T2} offen offset:{32 * g} sc1")
        a("s_mov_b64 exec, -1")
        get_nonce(72, T)
        a(f"""
v_mov_b32 v{T+2}, {CNT_OFF}
v_mov_b32 v{T+3}, 1
s_mov_b64 exec, 1
ds_add_rtn_u32 v{T+4}, v{T+2}, v{T+3}
s_waitcnt lgkmcnt(0)
s_mov_b64 exec, -1
v_readfirstlane_b32 s{S_T0}, v{T+4}
s_cmp_lg_u32 s{S_T0}, 3
s_cbranch_scc1 {lab}
s_lshl_b32 s{S_T0}, s{S_U0}, 4
s_add_u32 s{S_T0}, s{S_T0}, s{S_M}
s_lshl_b32 s{S_T0}, s{S_T0}, 7
s_add_u32 s{S_T0}, s{S_T0}, {FLAGKV_OFF}
s_mov_b64 exec, 1
buffer_store_dword v{T+1}, v{T}, {sr(SRD_WS,4)}, s{S_T0} offen sc1
s_mov_b64 exec, -1
""")
        a.label(lab)
        a("s_waitcnt lgkmcnt(0)")
        W.all_done()
    def p2():
        lab = a.uid("p2")
        a(f"s_cmp_lg_u32 s{S_W}, 7"); a(f"s_cbranch_scc1 {lab}_np")
        get_nonce(72, T)
        a(f"""
s_lshl_b32 s{S_T0}, s{S_U0}, 11
s_add_u32 s{S_T0}, s{S_T0}, {FLAGKV_OFF}
v_and_b32 v{T}, 15, v{l}
v_lshlrev_b32 v{T}, 7, v{T}
{lab}_poll:
buffer_load_dword v{T+1}, v{T}, {sr(SRD_WS,4)}, s{S_T0} offen sc1
s_waitcnt vmcnt(0)
v_cmp_ne_u32 vcc, s72, v{T+1}
s_nop 1
s_cbranch_vccz {lab}_np
s_sleep 4
s_branch {lab}_poll
{lab}_np:
s_barrier
""")
        stamp(a)
        X0 = V_X
        a(f"""
s_lshl_b32 s{S_T0}, s{S_U0}, 2
s_lshr_b32 s{S_T1}, s{S_W}, 1
s_add_u32 s{S_T0}, s{S_T0}, s{S_T1}
s_and_b32 s{S_T1}, s{S_W}, 1
s_lshl_b32 s{S_T1}, s{S_T1}, 10
s_lshl_b32 s{S_T2}, s{S_T0}, 11
s_add_u32 s{S_T2}, s{S_T2}, s{S_T1}
s_add_u32 s{S_T2}, s{S_T2}, {ZP_OFF}
s_lshl_b32 s{S_T0}, s{S_T0}, 15
s_add_u32 s{S_T0}, s{S_T0}, s{S_T1}
s_add_u32 s{S_T0}, s{S_T0}, {KVP_OFF}
buffer_load_dwordx4 {vr(X0 + 64, 4)}, v{V_L16}, {sr(SRD_WS,4)}, s{S_T2} offen sc1
""")
        for mm in range(16):
            a(f"buffer_load_dwordx4 {vr(X0 + 4 * mm, 4)}, v{V_L16}, {sr(SRD_WS,4)}, s{S_T0} offen sc1")
            if mm < 15: a(f"s_add_u32 s{S_T0}, s{S_T0}, 2048")
        Z = X0 + 64
        a("s_waitcnt vmcnt(16)")
        for r in range(4): a(f"v_add_f32_dpp v{Z + r}, v{Z + r}, v{Z + r} row_ror:8 row_mask:0xf bank_mask:0xf")
        for r in range(4): a(f"v_mov_b32 v{Z + 4 + r}, v{Z + r}")
        a("s_nop 1")
        for r in range(4): a(f"v_permlane16_swap_b32 v{Z + r}, v{Z + 4 + r}")
        for r in range(4): a(f"v_add_f32 v{Z + r}, v{Z + r}, v{Z + 4 + r}")
        for r in range(4): a(f"v_mov_b32 v{Z + 4 + r}, v{Z + r}")
        a("s_nop 1")
        for r in range(4): a(f"v_permlane32_swap_b32 v{Z + r}, v{Z + 4 + r}")
        for r in range(4): a(f"v_add_f32 v{Z + r}, v{Z + r}, v{Z + 4 + r}")
        a(f"s_lshl_b32 s{S_T1}, s{S_W}, 7\ns_add_u32 s{S_T1}, s{S_T1}, {ZS_OFF}\nv_add_u32 v{T}, s{S_T1}, v{V_L16}\ns_mov_b64 exec, 0xff\nds_write_b128 v{T}, {vr(Z, 4)}\ns_mov_b64 exec, -1")
        for mm in range(1, 16):
            a(f"s_waitcnt vmcnt({15 - mm})")
            for r in range(4): a(f"v_add_f32 v{X0 + r}, v{X0 + r}, v{X0 + 4 * mm + r}")
        a(f"s_lshl_b32 s{S_T1}, s{S_W}, 10\ns_add_u32 s{S_T1}, s{S_T1}, {KS_OFF}\nv_add_u32 v{T}, s{S_T1}, v{V_L16}\nds_write_b128 v{T}, {vr(X0, 4)}")
        a("s_waitcnt lgkmcnt(0)")
        a("s_barrier")
        a(f"""
v_lshrrev_b32 v{T}, 5, v{l}
v_bfe_u32 v{T+1}, v{l}, 4, 1
v_cmp_eq_u32 vcc, v{T}, v{T+1}
v_and_b32 v{T+2}, 15, v{l}
s_lshl_b32 s{S_T0}, s{S_HB}, 1
v_add_u32 v{T}, s{S_T0}, v{T}                ; hl
v_lshlrev_b32 v{T+3}, 11, v{T}
v_lshl_add_u32 v{T+3}, v{T+2}, 4, v{T+3}
v_add_u32 v{T+3}, {KS_OFF}, v{T+3}
v_lshlrev_b32 v{T+4}, 8, v{T}
v_add_u32 v{T+4}, {ZS_OFF}, v{T+4}
v_cndmask_b32 v{T+5}, 0, -1, vcc
""")
        AKV, AZ = X0 + 72, X0 + 88
        for m4 in range(4):
            R = X0 + 24 * (m4 & 1)
            a(f"ds_read_b128 {vr(R,4)}, v{T+3} offset:{m4 * 512}")
            a(f"ds_read_b128 {vr(R+4,4)}, v{T+3} offset:{m4 * 512 + 256}")
            a(f"ds_read_b128 {vr(R+8,4)}, v{T+4} offset:{m4 * 32}")
            a(f"ds_read_b128 {vr(R+12,4)}, v{T+4} offset:{m4 * 32 + 16}")
            a(f"ds_read_b128 {vr(R+16,4)}, v{T+4} offset:{128 + m4 * 32}")
            a(f"ds_read_b128 {vr(R+20,4)}, v{T+4} offset:{128 + m4 * 32 + 16}")
            a("s_waitcnt lgkmcnt(0)")
            for i in range(8): a(f"v_add_f32 v{R + 8 + i}, v{R + 8 + i}, v{R + 16 + i}")
            for q in range(4):
                a(f"v_cvt_pk_bf16_f32 v{AKV + 4 * m4 + q}, v{R + 2 * q}, v{R + 1 + 2 * q}")
                a(f"v_cvt_pk_bf16_f32 v{AZ + 4 * m4 + q}, v{R + 8 + 2 * q}, v{R + 9 + 2 * q}")
            for q in range(4):
                a(f"v_and_b32 v{AKV + 4 * m4 + q}, v{AKV + 4 * m4 + q}, v{T+5}")
                a(f"v_and_b32 v{AZ + 4 * m4 + q}, v{AZ + 4 * m4 + q}, v{T+5}")
        a("s_nop 1")
        for m4 in range(4): a(f"v_mfma_f32_32x32x16_bf16 {vr(V_ACC1,16)}, {vr(AKV + 4 * m4, 4)}, {vr(V_E + 4 * m4, 4)}, {'0' if m4 == 0 else vr(V_ACC1,16)}")
        for m4 in range(4): a(f"v_mfma_f32_32x32x16_bf16 {vr(V_ACC2,16)}, {vr(AZ + 4 * m4, 4)}, {vr(V_E + 4 * m4, 4)}, {'0' if m4 == 0 else vr(V_ACC2,16)}")
        a("s_nop 7\ns_nop 7")
        a(f"v_add_f32 v{V_ACC2}, {flit(1e-6)}, v{V_ACC2}\nv_add_f32 v{V_ACC2+8}, {flit(1e-6)}, v{V_ACC2+8}\nv_rcp_f32 v{V_ACC2}, v{V_ACC2}\nv_rcp_f32 v{V_ACC2+8}, v{V_ACC2+8}\ns_nop 0")
        for i in range(16): a(f"v_mul_f32 v{V_ACC1 + i}, v{V_ACC1 + i}, v{V_ACC2 if i < 8 else V_ACC2 + 8}")
        for q in range(8): a(f"v_cvt_pk_bf16_f32 v{X0 + q}, v{V_ACC1 + 2 * q}, v{V_ACC1 + 2 * q + 1}")
        a(f"""
s_lshl_b32 s{S_T1}, s{S_TB32}, 5
s_lshl_b32 s{S_T2}, s{S_U0}, 2
s_add_u32 s{S_T1}, s{S_T1}, s{S_T2}
s_lshl_b32 s{S_T2}, s{S_HB}, 1
s_add_u32 s{S_T1}, s{S_T1}, s{S_T2}
s_lshl_b32 s{S_T1}, s{S_T1}, 10
s_add_u32 s{S_T1}, s{S_T1}, {O_OFF}
buffer_store_dwordx4 {vr(X0, 4)}, v{V_L16}, {sr(SRD_WS,4)}, s{S_T1} offen{' sc1' if FUSED['on'] else ''}
buffer_store_dwordx4 {vr(X0 + 4, 4)}, v{V_L16}, {sr(SRD_WS,4)}, s{S_T1} offen offset:1024{' sc1' if FUSED['on'] else ''}
""")
    def qstore():
        a(f"""
s_lshl_b32 s{S_T1}, s{S_TB32}, 4
s_lshl_b32 s{S_T2}, s{S_U0}, 1
s_add_u32 s{S_T1}, s{S_T1}, s{S_T2}
s_add_u32 s{S_T1}, s{S_T1}, s{S_HB}
s_lshl_b32 s{S_T1}, s{S_T1}, 12
s_add_u32 s{S_T1}, s{S_T1}, {PHIQ_OFF}
""")
        for q in range(4):
            a(f"buffer_store_dwordx4 {vr(V_E + 4 * q, 4)}, v{V_L16}, {sr(SRD_WS,4)}, s{S_T1} offen offset:{1024 * q}")

    def finish(flag_off):
        if not FUSED['on']:
            stamp(a); stamp_dump(a); a("s_endpgm"); return
        stamp(a)
        get_nonce(72, T)
        a("s_waitcnt lgkmcnt(0)")
        a("s_barrier")
        lab = a.uid("fin")
        a(f"""
s_cmp_lg_u32 s{S_W}, 0
s_cbranch_scc1 {lab}
s_lshl_b32 s{S_T0}, s{S_M}, 3
s_lshr_b32 s{S_T1}, s{S_C}, 1
s_add_u32 s{S_T0}, s{S_T0}, s{S_T1}
s_lshl_b32 s{S_T0}, s{S_T0}, 7
s_add_u32 s{S_T0}, s{S_T0}, {flag_off}
s_mov_b64 exec, 1
buffer_store_dword v{T+1}, v{T}, {sr(SRD_WS,4)}, s{S_T0} offen sc1
s_mov_b64 exec, -1
{lab}:
s_branch p3_entry
""")
    a.label("k1_att")
    a(f"""
s_cmp_lg_u32 s2, 0
s_cbranch_scc1 k1_nn
s_cmp_lg_u32 s{S_W}, 0
s_cbranch_scc1 k1_nn
s_memrealtime s[84:85]
s_waitcnt lgkmcnt(0)
s_or_b32 s84, s84, 1
v_mov_b32 v{T}, 0
v_mov_b32 v{T+1}, s84
s_mov_b64 exec, 1
buffer_store_dword v{T+1}, v{T}, s[92:95], 0 offen sc1
s_mov_b64 exec, -1
k1_nn:
""")
    tiles = [TQ, TQ, TQ]; NT = 3
    startup(tiles, True)
    a(f"v_mov_b32 v{T+8}, {CNT_OFF}\nv_mov_b32 v{T+9}, 0\nds_write_b32 v{T+8}, v{T+9}"); W.lq.append("cnt")
    step(1, tiles, NT, True, [ops_SM1(0)])
    step(2, tiles, NT, False, [ops_SM2() + ops_EV() + ops_KVW()])
    kvx()
    run(ops_SM1(2)); run(ops_SM2())
    stamp(a)
    p2()
    finish(FLAGO_OFF)
    for NT, nm in ((6, "k1_ffn6"), (4, "k1_ffn4")):
        a.label(nm)
        tiles = [TG, TU] * (NT // 2)
        units = [S_U0, S_U1, 77]
        startup(tiles, False)
        for Tn in range(1, NT):
            if Tn % 2 == 1: step(Tn, tiles, NT, False, [ops_EG(Tn - 1, V_E, split=(Tn != NT - 1))])
            else: step(Tn, tiles, NT, False, [ops_EG2(V_E) + ops_EU(Tn - 1, V_E, soff_ops(units[Tn // 2 - 1]))])
        u = units[NT // 2 - 1]
        lab = a.uid("sk")
        a(f"s_lshl_b32 s{S_T1}, s{u}, 1\ns_add_u32 s{S_T1}, s{S_T1}, s{S_HB}\ns_cmp_ge_u32 s{S_T1}, 43\ns_cbranch_scc1 {lab}")
        run(ops_EU(NT - 1, V_E, soff_ops(u)))
        a.label(lab)
        finish(FLAGH_OFF)
    a.label("k1_exit")
    a("s_endpgm")
    if FUSED['on']:
        import p3
        p3.gen_p3(a)
```

```python
from asmlib import *
from sched import Op, Weaver
from p1 import H_OFF, O_OFF, PHIQ_OFF, KVP_OFF, flit, LOG2E
import p1
FLAG_OFF = 0x1800000
RING = 10
WO_LDS = 4 * RING * 2048
KL = WO_LDS + 65536
CNT = KL + 8704

def gen_p3(a):
    W = Weaver(a)
    S_W, S_MT, S_NT = 3, 6, 7
    SRD_WS, SRD_W, SRD_X, SRD_O, SRD_D, SRD_WO = 32, 36, 40, 44, 60, 68
    S_AB, S_WB, S_NK, S_LB = 48, 49, 50, 51
    T0, T1, T2 = 56, 57, 58
    V_L, V_L16, V_WOFF, V_WA, V_WB = 1, 2, 3, 4, 5
    V_T = 6
    V_F = 16
    V_ACC = 48
    V_H = 112
    RH, D = 12, 9
    ST = p1.STAMP
    def stamp():
        if not ST["on"]: return
        k_ = ST["n"]; ST["n"] += 1
        if k_ >= 14: return
        a("s_memtime s[84:85]"); a("s_waitcnt lgkmcnt(0)")
        a(f"v_mov_b32 v14, s84\nv_mov_b32 v15, 0\nbuffer_store_dword v14, v15, {sr(SRD_WS,4)}, s89 offen offset:{4 * k_}")
        a.vm_issue("stamp")
    def tr_addr(base_sgpr_expr):
        a(f"""
v_lshrrev_b32 v{V_T}, 5, v{V_L}
v_bfe_u32 v{V_T+1}, v{V_L}, 2, 2
v_lshl_add_u32 v{V_T+2}, v{V_T}, 2, v{V_T+1}
v_lshlrev_b32 v{V_T+2}, 7, v{V_T+2}
v_bfe_u32 v{V_T+3}, v{V_L}, 4, 1
v_lshlrev_b32 v{V_T+3}, 1, v{V_T+3}
v_bfe_u32 v{V_T+4}, v{V_L}, 1, 1
v_add_u32 v{V_T+3}, v{V_T+3}, v{V_T+4}
v_lshrrev_b32 v{V_T+4}, 1, v{V_T+1}
v_lshlrev_b32 v{V_T+4}, 2, v{V_T+4}
v_xor_b32 v{V_T+3}, v{V_T+3}, v{V_T+4}
v_lshl_add_u32 v{V_T+2}, v{V_T+3}, 4, v{V_T+2}
v_and_b32 v{V_T+4}, 1, v{V_L}
v_lshl_add_u32 v{V_T+2}, v{V_T+4}, 3, v{V_T+2}
v_add_u32 v{V_WA}, {base_sgpr_expr}, v{V_T+2}
""")
    FLAGH, FLAGO = 0x1780000, 0x17C0000
    a.label("p3_entry")
    a(f"""
v_mbcnt_lo_u32_b32 v{V_L}, -1, 0
v_mbcnt_hi_u32_b32 v{V_L}, -1, v{V_L}
s_and_b32 s{T0}, s2, 7
s_lshr_b32 s{T1}, s2, 3
s_and_b32 s{S_MT}, s{T1}, 3
s_lshl_b32 s{T0}, s{T0}, 2
s_add_u32 s{S_MT}, s{S_MT}, s{T0}
s_lshr_b32 s{S_NT}, s{T1}, 2
v_lshlrev_b32 v{V_L16}, 4, v{V_L}
v_lshrrev_b32 v{V_T}, 3, v{V_L}
v_and_b32 v{V_T+1}, 7, v{V_L}
v_bfe_u32 v{V_T+2}, v{V_L}, 4, 1
v_lshlrev_b32 v{V_T+2}, 2, v{V_T+2}
v_xor_b32 v{V_T+1}, v{V_T+1}, v{V_T+2}
v_lshlrev_b32 v{V_T+1}, 4, v{V_T+1}
v_lshl_add_u32 v{V_WOFF}, v{V_T}, 10, v{V_T+1}
s_mov_b32 s{SRD_WS}, s28
s_mov_b32 s{SRD_WS+1}, s29
s_mov_b32 s{SRD_WS+2}, 0x10000000
s_mov_b32 s{SRD_WS+3}, 0x00020000
s_cmp_ge_u32 s{S_W}, 4
s_cbranch_scc1 p3_p2
""")
    def poll(flag_off, lab):
        a(f"""
s_lshr_b32 s{T0}, s{S_MT}, 1
s_lshl_b32 s{T0}, s{T0}, 10
s_add_u32 s{T0}, s{T0}, {flag_off}
v_and_b32 v{V_T}, 7, v{V_L}
v_lshlrev_b32 v{V_T}, 7, v{V_T}
{lab}:
buffer_load_dword v{V_T+2}, v{V_T}, {sr(SRD_WS,4)}, s{T0} offen sc1
s_waitcnt vmcnt(0)
v_cmp_ne_u32 vcc, s72, v{V_T+2}
s_nop 1
s_cbranch_vccz {lab}_ok
s_sleep 4
s_branch {lab}
{lab}_ok:
""")
    n_base = ST["n"]; stamp()
    a(f"""
s_mul_i32 s{S_LB}, s{S_W}, {RING * 2048}
s_mov_b32 s{SRD_W}, s22
s_mov_b32 s{SRD_W+1}, s23
s_mov_b32 s{SRD_W+2}, {1376*1024}
s_mov_b32 s{SRD_W+3}, 0x00020000
s_mul_i32 s{T0}, s{S_W}, 22
s_cmp_eq_u32 s{S_W}, 3
s_cselect_b32 s{T1}, 1, 0
s_sub_u32 s{T0}, s{T0}, s{T1}             ; ks0
s_cmp_ge_u32 s{S_W}, 2
s_cselect_b32 s{S_NK}, 21, 22
s_lshl_b32 s{T2}, s{S_MT}, 1
s_mul_i32 s{S_AB}, s{T2}, {86*1024}
s_lshl_b32 s{T1}, s{T0}, 10
s_add_u32 s{S_AB}, s{S_AB}, s{T1}
s_add_u32 s54, s{S_AB}, {86*1024}
s_lshl_b32 s{S_WB}, s{T0}, 14
s_lshl_b32 s{T0}, s{S_NT}, 7
s_add_u32 s{S_WB}, s{S_WB}, s{T0}
""")
    a.vm_reset()
    NKM = 22
    def guard(ks, fn, tag_issue=True):
        lab = None
        if ks >= 21:
            lab = a.uid("g"); a(f"s_cmp_le_u32 s{S_NK}, {ks}"); a(f"s_cbranch_scc1 {lab}")
        fn(lab is None)
        if lab: a.label(lab)
    def issue_w(ks):
        def f(count):
            for e in range(2):
                a(f"s_add_u32 m0, s{S_LB}, {(ks % RING) * 2048 + e * 1024}")
                a(f"s_add_u32 s{T0}, s{S_WB}, {ks * 16384 + e * 8192}")
                a(f"buffer_load_dwordx4 v{V_WOFF}, {sr(SRD_W,4)}, s{T0} offen lds")
                if count: a.vm_issue(f"w{ks}")
        guard(ks, f)
    def issue_h(ks):
        def f(count):
            for e in range(2):
                a(f"s_add_u32 s{T0}, s{S_AB if e == 0 else 54}, {ks * 1024}")
                a(f"buffer_load_dwordx4 {vr(V_H + 8 * (ks % RH) + 4 * e, 4)}, v{V_L16}, {sr(SRD_WS,4)}, s{T0} offen sc1")
                if count: a.vm_issue(f"h{ks}")
        guard(ks, f)
    for ks in range(D): issue_w(ks)
    tr_addr(f"s{S_LB}")
    a(f"v_xor_b32 v{V_WB}, 64, v{V_WA}")
    poll(FLAGH, "p3_pollh")
    a.vm_reset()
    stamp()
    for ks in range(D): issue_h(ks)
    def rd(ks):
        F = V_F + 8 * (ks & 1); base = (ks % RING) * 2048
        return Op([f"ds_read_b64_tr_b16 {vr(F,2)}, v{V_WA} offset:{base}", f"ds_read_b64_tr_b16 {vr(F+2,2)}, v{V_WA} offset:{base + 1024}",
                   f"ds_read_b64_tr_b16 {vr(F+4,2)}, v{V_WB} offset:{base}", f"ds_read_b64_tr_b16 {vr(F+6,2)}, v{V_WB} offset:{base + 1024}"],
                  lds=[f"k{ks}a", f"k{ks}a", f"k{ks}b", f"k{ks}b"])
    W.lds_reset()
    a.wait_vm("w0"); W.emit(rd(0))
    BAR1_AT = 0
    for ks in range(NKM):
        if ks in (1, 6, 12, 18): stamp()
        if ks == BAR1_AT: a("s_barrier")
        if ks >= 21: a(f"s_cmp_le_u32 s{S_NK}, {ks}"); a("s_cbranch_scc1 p3_done")
        if ks + 1 < NKM:
            if ks + 1 >= 21: a("s_waitcnt vmcnt(0)")
            else: a.wait_vm([f"w{ks+1}", f"h{ks}"])
            W.emit(rd(ks + 1))
        else: a("s_waitcnt vmcnt(0)")
        F = V_F + 8 * (ks & 1); Hf = V_H + 8 * (ks % RH)
        for tb in range(2):
            for cb in range(2):
                acc = V_ACC + 32 * tb + 16 * cb
                W.emit(Op(f"v_mfma_f32_32x32x16_bf16 {vr(acc,16)}, {vr(F + 4 * cb,4)}, {vr(Hf + 4 * tb,4)}, {'0' if ks == 0 else vr(acc,16)}", needs=f"k{ks}{'ab'[cb]}"))
        if ks + D < NKM: issue_w(ks + D); issue_h(ks + D)
    a.label("p3_done")
    stamp()
    a("s_waitcnt lgkmcnt(0)")
    a("s_barrier")
    a("s_nop 7"); a("s_nop 7")
    a(f"s_lshl_b32 s{T0}, s{S_W}, 14\nv_add_u32 v{V_T}, s{T0}, v{V_L16}")
    for p in range(16):
        a(f"ds_write_b128 v{V_T}, {vr(V_ACC + 4 * p, 4)} offset:{p * 1024}")
    a("s_waitcnt lgkmcnt(0)")
    a("s_barrier")
    stamp()
    a("s_branch p3_end")
    a.label("p3_p2")
    a(f"""
s_sub_u32 s4, s{S_W}, 4
s_mov_b32 s{SRD_WO}, s14
s_mov_b32 s{SRD_WO+1}, s15
s_mov_b32 s{SRD_WO+2}, {512*1024}
s_mov_b32 s{SRD_WO+3}, 0x00020000
s_lshl_b32 s{T1}, s4, 17
s_lshl_b32 s{T0}, s{S_NT}, 7
s_add_u32 s{T1}, s{T1}, s{T0}
s_lshl_b32 s{T2}, s4, 14
s_add_u32 s{T2}, s{T2}, {WO_LDS}
s_lshl_b32 s55, s{S_MT}, 1
s_lshr_b32 s47, s4, 1
s_add_u32 s55, s55, s47
s_lshl_b32 s55, s55, 15
s_add_u32 s55, s55, {O_OFF}
""")
    ST["n"] = n_base; stamp()
    OF = 64
    for k_ in range(16):
        a(f"s_add_u32 m0, s{T2}, {k_ * 1024}\ns_add_u32 s{T0}, s{T1}, {k_ * 8192}\nbuffer_load_dwordx4 v{V_WOFF}, {sr(SRD_WO,4)}, s{T0} offen lds")
    a(f"""
s_and_b32 s{T0}, s4, 1
s_lshl_b32 s{T0}, s{T0}, 6
""")
    tr_addr(f"{WO_LDS}")
    a(f"""
v_xor_b32 v{V_WA}, s{T0}, v{V_WA}
v_and_b32 v{V_T+2}, 31, v{V_L}
v_lshlrev_b32 v{V_T+2}, 10, v{V_T+2}
v_lshrrev_b32 v{V_T+3}, 5, v{V_L}
v_lshl_add_u32 v{V_WB}, v{V_T+3}, 3, v{V_T+2}
s_mov_b32 s{SRD_X}, s8
s_mov_b32 s{SRD_X+1}, s9
s_mov_b32 s{SRD_X+2}, 0x200000
s_mov_b32 s{SRD_X+3}, 0x00020000
s_mov_b32 s{SRD_O}, s24
s_mov_b32 s{SRD_O+1}, s25
s_mov_b32 s{SRD_O+2}, 0x200000
s_mov_b32 s{SRD_O+3}, 0x00020000
s_lshl_b32 s{T0}, s{S_MT}, 16
s_lshr_b32 s{T1}, s4, 1
s_lshl_b32 s{T1}, s{T1}, 15
s_add_u32 s{T0}, s{T0}, s{T1}
s_lshl_b32 s{T1}, s{S_NT}, 7
s_add_u32 s{T0}, s{T0}, s{T1}
s_and_b32 s{T1}, s4, 1
s_lshl_b32 s{T1}, s{T1}, 6
s_add_u32 s52, s{T0}, s{T1}
""")
    XIN = 192
    for g in range(4): a(f"buffer_load_dwordx2 {vr(XIN + 2 * g, 2)}, v{V_WB}, {sr(SRD_X,4)}, s52 offen offset:{16 * g}")
    a("s_waitcnt vmcnt(0)")
    a("s_barrier")
    poll(FLAGO, "p3_pollo")
    stamp()
    for ks in range(32):
        a(f"buffer_load_dwordx4 {vr(OF + 4 * ks, 4)}, v{V_L16}, {sr(SRD_WS,4)}, s55 offen offset:{(ks % 4) * 1024} sc1")
        if ks % 4 == 3: a("s_add_u32 s55, s55, 4096")
    W.lds_reset()
    def rds(ks):
        F = V_F + 4 * (ks % 4)
        return Op([f"ds_read_b64_tr_b16 {vr(F,2)}, v{V_WA} offset:{ks * 2048}", f"ds_read_b64_tr_b16 {vr(F+2,2)}, v{V_WA} offset:{ks * 2048 + 1024}"], lds=[f"s{ks}", f"s{ks}"])
    for ks in range(3): W.emit(rds(ks))
    for ks in range(32):
        if ks + 3 < 32: W.emit(rds(ks + 3))
        a(f"s_waitcnt vmcnt({31 - ks})")
        W.emit(Op(f"v_mfma_f32_32x32x16_bf16 v[48:63], {vr(V_F + 4 * (ks % 4), 4)}, {vr(OF + 4 * ks, 4)}, {'0' if ks == 0 else 'v[48:63]'}", needs=f"s{ks}"))
    stamp()
    a("s_barrier")
    a("s_barrier")
    a(f"s_lshl_b32 s{T0}, s4, 12\nv_add_u32 v{V_T}, s{T0}, v{V_L16}")
    R = 64
    for src in range(4):
        for e in range(4):
            a(f"ds_read_b128 {vr(R + 16 * src + 4 * e, 4)}, v{V_T} offset:{src * 16384 + e * 1024}")
    a("s_waitcnt lgkmcnt(8)")
    for i in range(16): a(f"v_add_f32 v{R + i}, v{R + i}, v{R + 16 + i}")
    a("s_waitcnt lgkmcnt(0)")
    for i in range(16): a(f"v_add_f32 v{R + 32 + i}, v{R + 32 + i}, v{R + 48 + i}")
    for i in range(16): a(f"v_add_f32 v{R + i}, v{R + i}, v{R + 32 + i}")
    for i in range(16): a(f"v_mul_f32 v{R + 16 + i}, {flit(-LOG2E)}, v{R + i}")
    for i in range(16): a(f"v_exp_f32 v{R + 16 + i}, v{R + 16 + i}")
    for i in range(16): a(f"v_mul_f32 v{R + i}, v{R + i}, v{48 + i}")
    for i in range(16): a(f"v_add_f32 v{R + 16 + i}, 1.0, v{R + 16 + i}")
    for i in range(16): a(f"v_rcp_f32 v{R + 16 + i}, v{R + 16 + i}")
    for i in range(16):
        src = XIN + (i >> 1)
        if i & 1: a(f"v_and_b32 v{R + 32 + i}, 0xffff0000, v{src}")
        else: a(f"v_lshlrev_b32 v{R + 32 + i}, 16, v{src}")
    for i in range(16): a(f"v_fma_f32 v{R + i}, v{R + i}, v{R + 16 + i}, v{R + 32 + i}")
    for q in range(8): a(f"v_cvt_pk_bf16_f32 v{R + 16 + q}, v{R + 2 * q}, v{R + 2 * q + 1}")
    for g in range(4): a(f"buffer_store_dwordx2 {vr(R + 16 + 2 * g, 2)}, v{V_WB}, {sr(SRD_O,4)}, s52 offen offset:{16 * g}")
    stamp()
    a.label("p3_end")
    a("s_endpgm")
```
